```python
import torch

def _softmax(x, axis=-1):
    return torch.softmax(x, dim=axis)
def _gelu(x):
    return torch.nn.functional.gelu(x, approximate="tanh")
def _silu(x):
    return torch.nn.functional.silu(x)
def _sigmoid(x):
    return torch.sigmoid(x)
def _layernorm(x, axis=-1, eps=1e-5):
    m = x.mean(dim=axis, keepdim=True)
    v = x.var(dim=axis, keepdim=True, unbiased=False)
    return (x - m) / torch.sqrt(v + eps)
def _scatter_add(tgt, idx, src, axis=0):
    return tgt.clone().index_add_(axis, idx, src)
def _segment_sum(src, seg, n):
    out = torch.zeros((n,) + src.shape[1:], dtype=src.dtype)
    return out.index_add_(0, seg, src)
def _pad(x, pw):
    flat = tuple(v for pair in reversed(pw) for v in pair)
    return torch.nn.functional.pad(x, flat)

kernel_name = 'standalone__paged_block_table_kv_pagedattention__decode'

def setup_inputs():

    _w = (lambda a: (lambda t: t.to(torch.bfloat16) if t.is_floating_point() else t)(torch.as_tensor(a)))
    B, Hq, Hkv, Sq, Skv, D = 1, 32, 8, 1, 65536, 128
    bs = 16
    nbps = max(1, Skv // bs)
    num_phys = B * nbps + 4
    bt = torch.randperm(num_phys)[: B * nbps].reshape(B, nbps).to(torch.int64)
    cl = (nbps * bs - (torch.arange(1, B + 1, dtype=torch.int64) * 2654435761) % max(1, nbps * bs // 2)).to(torch.int64)
    return {
        "q": _w((lambda *s: torch.randn(*s, dtype=torch.bfloat16) * 0.8)(B, Hq, Sq, D)),
        "k_cache": _w((lambda *s: torch.randn(*s, dtype=torch.bfloat16) * 0.8)(num_phys, bs, Hkv, D)),
        "v_cache": _w((lambda *s: torch.randn(*s, dtype=torch.bfloat16) * 0.05)(num_phys, bs, Hkv, D)),
        "block_table": _w(bt),
        "context_lens": _w(cl),
    }

def reference(q, k_cache, v_cache, block_table, context_lens):
    B, Hq, Sq, D = q.shape
    bs = k_cache.shape[1]
    Hkv = k_cache.shape[2]
    nbps = block_table.shape[1]
    Skv = nbps * bs
    bt = block_table.reshape(-1)
    k = (lambda x, *d: x.permute(*d))(k_cache[bt].reshape(B, Skv, Hkv, D), 0, 2, 1, 3)
    v = (lambda x, *d: x.permute(*d))(v_cache[bt].reshape(B, Skv, Hkv, D), 0, 2, 1, 3)
    g = Hq // Hkv
    qg = q.reshape(B, Hkv, g, Sq, D)
    scores = torch.einsum("bhgqd,bhkd->bhgqk", qg, k) * (D ** -0.5)
    pos = torch.arange(Skv)
    msk = pos[None, :] < context_lens[:, None]
    scores = torch.where(msk[:, None, None, None, :], scores, -1e9)
    p = _softmax(scores, axis=-1)
    out = torch.einsum("bhgqk,bhkd->bhgqd", p, v)
    return out.reshape(B, Hq, Sq, D)
```

```python
import sys, struct, math

NAME = "standalone__paged_block_table_kv_pagedattention__decode"
KV_BYTES = 4100 * 32768
WS_BYTES = 537395200
ML_BASE = 1 << 20
STAMP_BASE = 2 << 20

def f32(x):
    return "0x%08x" % struct.unpack("<I", struct.pack("<f", x))[0]

HEADER = """; Kernarg layout for this problem (64 bytes, ptrs only, base s[0:1]):
"""

class G:
    def __init__(s):
        s.L = []
    def __call__(s, t):
        s.L.append("    " + t)
    def lab(s, t):
        s.L.append(t + ":")
    def raw(s, t):
        s.L.append(t)
    def text(s):
        return "\n".join(s.L) + "\n"

def kd(name, vgpr, sgpr):
    acc = (vgpr + 3) // 4 * 4
    return f""".amdhsa_kernel {name}
  .amdhsa_next_free_vgpr {vgpr}
  .amdhsa_next_free_sgpr {sgpr}
  .amdhsa_accum_offset {acc}
  .amdhsa_group_segment_fixed_size 0
  .amdhsa_kernarg_size 64
  .amdhsa_user_sgpr_count 2
  .amdhsa_user_sgpr_kernarg_segment_ptr 1
  .amdhsa_system_sgpr_workgroup_id_x 1
.end_amdhsa_kernel
"""

def gen(S=3, nt=True, stamps=False):
    g = G()
    pol = " nt" if nt else ""
    vK0, vK1, vV0, vV1 = 1, 2, 3, 4
    vQ = 8
    vA0, vA1 = 12, 16
    vM, vL, vSc, vG4 = 20, 21, 22, 23
    vSelAlo, vSelBlo, vSelAhi, vSelBhi = 24, 25, 26, 27
    vT0, vT1, vT2, vNEG = 28, 29, 30, 31
    vD = 32
    vKB = 64
    vVB = 64 + 32 * S
    NV = 64 + 64 * S
    sW, sH, sJ, sU = 3, 36, 37, 38
    sK, sN, sRem, sT0, sT1, sT2 = 39, 40, 41, 42, 43, 44
    sCL = 45
    sOOB = 46
    srdK, srdV, srdW = 48, 52, 56
    sBT = 60
    NBT = 8 + S + 1
    sSt = 60 + 2 * NBT
    nst = [0]
    def stamp():
        if stamps:
            g(f"s_memrealtime s[{sSt + 2*nst[0]}:{sSt + 2*nst[0] + 1}]")
            nst[0] += 1
    main = "pa_main_kernel"
    comb = "pa_comb_kernel"
    g.raw(HEADER.rstrip("\n"))
    g.raw(f"; @launch kernel={main} grid=(256,1,1) block=(512,1,1) lds=16640")
    g.raw(f"; @launch kernel={comb} grid=(32,1,1) block=(128,1,1) lds=0")
    g.raw('.amdgcn_target "amdgcn-amd-amdhsa--gfx950"')
    g.raw(".text")
    g.raw(f".globl {main}")
    g.raw(".p2align 8")
    g.raw(f".type {main},@function")
    g.lab(main)
    g("s_cmp_ge_u32 s2, 0x100")
    g("s_cbranch_scc1 L_main_end")
    g("s_load_dwordx16 s[4:19], s[0:1], 0")
    stamp()
    g("v_lshrrev_b32 v5, 6, v0")
    g("v_and_b32 v6, 63, v0")
    g(f"v_readfirstlane_b32 s{sW}, v5")
    g(f"s_lshr_b32 s{sH}, s2, 3")
    g(f"s_and_b32 s{sH}, s{sH}, 7")
    g(f"s_and_b32 s{sJ}, s2, 7")
    g(f"s_lshr_b32 s{sT0}, s2, 6")
    g(f"s_lshl_b32 s{sT0}, s{sT0}, 3")
    g(f"s_or_b32 s{sJ}, s{sJ}, s{sT0}")
    g(f"s_lshl_b32 s{sU}, s{sW}, 5")
    g(f"s_add_u32 s{sU}, s{sU}, s{sJ}")
    g(f"s_lshl_b32 s{sT0}, s{sU}, 3")
    g(f"s_lshl_b32 s{sT1}, s{sH}, 8")
    g(f"s_lshl_b32 s{sT2}, s{sH}, 10")
    g("v_lshrrev_b32 v5, 4, v6")
    g("v_and_b32 v7, 3, v6")
    g("v_lshlrev_b32 v7, 4, v7")
    g("v_lshl_add_u32 v7, v5, 6, v7")
    g(f"v_bfe_u32 v{vT0}, v6, 2, 2")
    g(f"v_lshl_add_u32 v{vK0}, v{vT0}, 13, v7")
    g(f"v_lshl_add_u32 v{vT1}, v{vT0}, 8, v7")
    g(f"v_add_u32 v{vT1}, s{sT2}, v{vT1}")
    g(f"v_and_b32 v{vT2}, 15, v6")
    g(f"v_lshlrev_b32 v{vT2}, 4, v{vT2}")
    g(f"v_lshl_add_u32 v{vV0}, v5, 13, v{vT2}")
    g(f"v_add_u32 v{vK1}, 0x1000, v{vK0}")
    g(f"v_add_u32 v{vV1}, 0x1000, v{vV0}")
    g("s_waitcnt lgkmcnt(0)")
    g(f"s_add_u32 s10, s10, s{sT0}")
    g("s_addc_u32 s11, s11, 0")
    g(f"s_load_dword s{sCL}, s[12:13], 0")
    for k in range(8):
        g(f"s_load_dwordx2 s[{sBT+2*k}:{sBT+2*k+1}], s[10:11], {hex(k*2048)}")
    g(f"global_load_dwordx4 v[{vQ}:{vQ+3}], v{vT1}, s[4:5]")
    g(f"s_add_u32 s{srdK}, s6, s{sT1}")
    g(f"s_addc_u32 s{srdK+1}, s7, 0")
    g(f"s_sub_u32 s{srdK+2}, {hex(KV_BYTES)}, s{sT1}")
    g(f"s_mov_b32 s{srdK+3}, 0x20000")
    g(f"s_add_u32 s{srdV}, s8, s{sT1}")
    g(f"s_addc_u32 s{srdV+1}, s9, 0")
    g(f"s_mov_b32 s{srdV+2}, s{srdK+2}")
    g(f"s_mov_b32 s{srdV+3}, 0x20000")
    g(f"s_mov_b32 s{srdW}, s18")
    g(f"s_mov_b32 s{srdW+1}, s19")
    g(f"s_mov_b32 s{srdW+2}, {hex(WS_BYTES)}")
    g(f"s_mov_b32 s{srdW+3}, 0x20000")
    g(f"s_mov_b32 s{sOOB}, 0x80000000")
    for k in range(8, NBT):
        g(f"s_mov_b64 s[{sBT+2*k}:{sBT+2*k+1}], 0")
    g(f"v_lshlrev_b32 v{vG4}, 2, v5")
    g(f"v_mov_b32 v{vSc}, {f32(128 ** -0.5 * math.log2(math.e))}")
    g(f"v_mov_b32 v{vNEG}, 0xff800000")
    g(f"v_mov_b32 v{vM}, {f32(-1e30)}")
    g(f"v_mov_b32 v{vL}, 0")
    for r in range(8):
        g(f"v_mov_b32 v{vA0+r}, 0")
    g("v_and_b32 v7, 3, v6")
    g(f"v_mov_b32 v{vT0}, 0x0c0c0c0c")
    def sel(dst, u_even, pat_even, pat_odd):
        g(f"v_mov_b32 v{vT1+0}, {pat_even}")
        g(f"v_mov_b32 v{vT2+0}, {pat_odd}")
        g(f"v_cmp_eq_u32 vcc, {u_even}, v7")
        g("s_nop 1")
        g(f"v_cndmask_b32 v{dst}, v{vT0}, v{vT1}, vcc")
        g(f"v_cmp_eq_u32 vcc, {u_even+1}, v7")
        g("s_nop 1")
        g(f"v_cndmask_b32 v{dst}, v{dst}, v{vT2}, vcc")
    sel(vSelAlo, 0, "0x0c0c0100", "0x01000c0c")
    sel(vSelBlo, 2, "0x0c0c0100", "0x01000c0c")
    sel(vSelAhi, 0, "0x0c0c0302", "0x03020c0c")
    sel(vSelBhi, 2, "0x0c0c0302", "0x03020c0c")
    g("s_waitcnt lgkmcnt(0)")
    stamp()
    g(f"s_max_i32 s{sCL}, s{sCL}, 0")
    g(f"s_min_i32 s{sCL}, s{sCL}, 0x10000")
    g(f"s_add_u32 s{sN}, s{sCL}, 31")
    g(f"s_lshr_b32 s{sN}, s{sN}, 5")
    g(f"s_add_u32 s{sN}, s{sN}, 255")
    g(f"s_sub_u32 s{sN}, s{sN}, s{sU}")
    g(f"s_lshr_b32 s{sN}, s{sN}, 8")
    g(f"s_lshl_b32 s{sT0}, s{sU}, 5")
    g(f"s_sub_i32 s{sRem}, s{sCL}, s{sT0}")
    g(f"s_cmp_eq_u32 s{sN}, 0")
    g("s_cbranch_scc1 L_epi")

    def issue(which, slot, bt, kexpr_imm):
        srd = srdK if which == "K" else srdV
        o0, o1 = (vK0, vK1) if which == "K" else (vV0, vV1)
        base = (vKB if which == "K" else vVB) + 32 * slot
        g(f"s_lshl_b32 s{sT1}, s{bt}, 15")
        g(f"s_lshl_b32 s{sT2}, s{bt+1}, 15")
        g(f"s_add_u32 s{sT0}, s{sK}, {kexpr_imm}")
        g(f"s_cmp_lt_u32 s{sT0}, s{sN}")
        g("s_cselect_b64 exec, -1, 1")
        g(f"s_cselect_b32 s{sT1}, s{sT1}, s{sOOB}")
        g(f"s_cselect_b32 s{sT2}, s{sT2}, s{sOOB}")
        for m in range(8):
            so = sT1 if m < 4 else sT2
            vo = o0 if (m & 2) == 0 else o1
            off = " offset:2048" if (m & 1) else ""
            g(f"buffer_load_dwordx4 v[{base+4*m}:{base+4*m+3}], v{vo}, s[{srd}:{srd+3}], s{so} offen{off}{pol}")
        g("s_mov_b64 exec, -1")

    g(f"s_mov_b32 s{sK}, 0")
    for s_ in range(S):
        issue("K", s_, sBT + 2 * s_, s_)
        issue("V", s_, sBT + 2 * s_, s_)
    stamp()
    TOT = 16 * S
    g.lab("L_loop")
    for s_ in range(S):
        KB = vKB + 32 * s_
        VB = vVB + 32 * s_
        D = lambda m, r=0: vD + 4 * m + r
        g(f"s_waitcnt vmcnt({TOT - 8})")
        for m in range(8):
            g(f"v_mfma_f32_16x16x32_bf16 v[{D(m)}:{D(m,3)}], v[{KB+4*m}:{KB+4*m+3}], v[{vQ}:{vQ+3}], 0")
        issue("K", s_, sBT + 2 * (S + s_), S)
        for r in range(4):
            for m in range(8):
                op = "v_mul_f32_dpp" if r == 0 else "v_fmac_f32_dpp"
                g(f"{op} v{D(m)}, v{D(m,r)}, v{vSc} quad_perm:[{r},{r},{r},{r}] row_mask:0xf bank_mask:0xf")
        g(f"s_cmp_ge_i32 s{sRem}, 32")
        g(f"s_cbranch_scc1 L_nomask{s_}")
        for m in range(8):
            cm = 16 * (m >> 2) + (m & 3)
            g(f"s_sub_i32 s{sT0}, s{sRem}, {cm}")
            g(f"v_cmp_gt_i32 vcc, s{sT0}, v{vG4}")
            g("s_nop 1")
            g(f"v_cndmask_b32 v{D(m)}, v{vNEG}, v{D(m)}, vcc")
        g.lab(f"L_nomask{s_}")
        g(f"v_max3_f32 v{vT0}, v{D(0)}, v{D(1)}, v{D(2)}")
        g(f"v_max3_f32 v{vT1}, v{D(3)}, v{D(4)}, v{D(5)}")
        g(f"v_max3_f32 v{vT0}, v{vT0}, v{D(6)}, v{D(7)}")
        g(f"v_max3_f32 v{vT0}, v{vT0}, v{vT1}, v{vM}")
        g(f"v_mov_b32 v{vT1}, v{vT0}")
        g("s_nop 1")
        g(f"v_permlane16_swap_b32 v{vT0}, v{vT1}")
        g(f"v_max_f32 v{vT0}, v{vT0}, v{vT1}")
        g(f"v_mov_b32 v{vT1}, v{vT0}")
        g("s_nop 1")
        g(f"v_permlane32_swap_b32 v{vT0}, v{vT1}")
        g(f"v_max_f32 v{vT0}, v{vT0}, v{vT1}")
        g(f"v_sub_f32 v{vT1}, v{vM}, v{vT0}")
        g(f"v_exp_f32 v{vT1}, v{vT1}")
        g(f"v_mov_b32 v{vM}, v{vT0}")
        for m in range(8):
            g(f"v_sub_f32 v{D(m)}, v{D(m)}, v{vT0}")
        for m in range(8):
            g(f"v_exp_f32 v{D(m)}, v{D(m)}")
            if m % 2 == 1:
                q = m // 2
                g(f"v_mov_b32_dpp v{vT2}, v{vT1} row_newbcast:{4*q} row_mask:{hex(1<<q)} bank_mask:0xf")
        g(f"v_fma_f32 v{vL}, v{vL}, v{vT1}, v{D(0)}")
        for m in range(1, 8):
            g(f"v_add_f32 v{vL}, v{vL}, v{D(m)}")
        for m in range(0, 8, 2):
            g(f"v_cvt_pk_bf16_f32 v{D(m,1)}, v{D(m)}, v{D(m+1)}")
        for r in range(8):
            g(f"v_mul_f32 v{vA0+r}, v{vA0+r}, v{vT2}")
        for m in range(0, 8, 2):
            g(f"v_perm_b32 v{D(m,2)}, v{D(m,1)}, v{D(m,1)}, v{vSelAlo}")
            g(f"v_perm_b32 v{D(m,3)}, v{D(m,1)}, v{D(m,1)}, v{vSelBlo}")
            g(f"v_perm_b32 v{D(m+1,2)}, v{D(m,1)}, v{D(m,1)}, v{vSelAhi}")
            g(f"v_perm_b32 v{D(m+1,3)}, v{D(m,1)}, v{D(m,1)}, v{vSelBhi}")
        g("s_nop 0")
        for m in range(8):
            g(f"s_waitcnt vmcnt({TOT - 1 - m})")
            g(f"v_mfma_f32_16x16x16_bf16 v[{vA0}:{vA0+3}], v[{D(m,2)}:{D(m,3)}], v[{VB+4*m}:{VB+4*m+1}], v[{vA0}:{vA0+3}]")
            g(f"v_mfma_f32_16x16x16_bf16 v[{vA1}:{vA1+3}], v[{D(m,2)}:{D(m,3)}], v[{VB+4*m+2}:{VB+4*m+3}], v[{vA1}:{vA1+3}]")
        g(f"s_add_u32 s{sT0}, s{sK}, 1")
        g(f"s_cmp_ge_u32 s{sT0}, s{sN}")
        g("s_cbranch_scc1 L_epi")
        issue("V", s_, sBT + 2 * (S + s_), S)
        g(f"s_add_u32 s{sK}, s{sK}, 1")
        g(f"s_sub_i32 s{sRem}, s{sRem}, 0x2000")
    for k in range(S, NBT - S):
        g(f"s_mov_b64 s[{sBT+2*k}:{sBT+2*k+1}], s[{sBT+2*(k+S)}:{sBT+2*(k+S)+1}]")
    g("s_branch L_loop")

    g.lab("L_epi")
    stamp()
    g(f"v_mov_b32 v{vT1}, v{vL}")
    g("v_and_b32 v6, 63, v0")
    g(f"s_lshl_b32 s{sT0}, s{sW}, 11")
    g(f"v_permlane16_swap_b32 v{vL}, v{vT1}")
    g(f"v_add_f32 v{vL}, v{vL}, v{vT1}")
    g(f"v_mov_b32 v{vT1}, v{vL}")
    g(f"v_lshlrev_b32 v5, 4, v6")
    g(f"v_add_u32 v5, s{sT0}, v5")
    g(f"v_permlane32_swap_b32 v{vL}, v{vT1}")
    g(f"v_add_f32 v{vL}, v{vL}, v{vT1}")
    g(f"s_lshl_b32 s{sT0}, s{sW}, 3")
    g(f"v_lshlrev_b32 v7, 4, v6")
    g(f"v_add_u32 v7, s{sT0}, v7")
    g(f"ds_write_b128 v5, v[{vA0}:{vA0+3}]")
    g(f"ds_write_b128 v5, v[{vA1}:{vA1+3}] offset:1024")
    g("s_mov_b64 exec, 0x1111")
    g(f"ds_write_b64 v7, v[{vM}:{vL}] offset:16384")
    g("s_mov_b64 exec, -1")
    g("v_lshlrev_b32 v5, 2, v0")
    g(f"s_and_b32 s{sT0}, s{sW}, 3")
    g(f"s_lshl_b32 s{sT1}, s{sT0}, 6")
    g(f"v_mov_b32 v7, s{sT1}")
    g("s_waitcnt lgkmcnt(0)")
    g("s_barrier")
    for i in range(4):
        g(f"ds_read_b128 v[{32+4*i}:{35+4*i}], v7 offset:{16384+16*i}")
    for w in range(8):
        g(f"ds_read_b32 v{48+w}, v5 offset:{2048*w}")
    g(f"s_lshl_b32 s{sT1}, s{sH}, 2")
    g(f"s_add_u32 s{sT1}, s{sT1}, s{sT0}")
    g(f"s_lshl_b32 s{sT1}, s{sT1}, 5")
    g(f"s_add_u32 s{sT1}, s{sT1}, s{sJ}")
    g(f"s_lshl_b32 s{sT2}, s{sT1}, 9")
    g(f"s_lshr_b32 s{sT0}, s{sW}, 2")
    g(f"s_lshl_b32 s{sK}, s{sT0}, 8")
    g(f"s_add_u32 s{sT2}, s{sT2}, s{sK}")
    g(f"s_lshl_b32 s{sT1}, s{sT1}, 3")
    g(f"s_add_u32 s{sT1}, s{sT1}, {hex(ML_BASE)}")
    g("v_lshlrev_b32 v5, 2, v6")
    g("s_waitcnt lgkmcnt(8)")
    mreg = lambda w: 32 + 2 * w
    lreg = lambda w: 33 + 2 * w
    g(f"v_max3_f32 v{vT0}, v{mreg(0)}, v{mreg(1)}, v{mreg(2)}")
    g(f"v_max3_f32 v{vT1}, v{mreg(3)}, v{mreg(4)}, v{mreg(5)}")
    g(f"v_max3_f32 v{vT0}, v{vT0}, v{mreg(6)}, v{mreg(7)}")
    g(f"v_max_f32 v{vM}, v{vT0}, v{vT1}")
    for w in range(8):
        g(f"v_sub_f32 v{mreg(w)}, v{mreg(w)}, v{vM}")
    for w in range(8):
        g(f"v_exp_f32 v{mreg(w)}, v{mreg(w)}")
    g("s_waitcnt lgkmcnt(0)")
    g(f"v_mul_f32 v{vT0}, v{mreg(0)}, v48")
    g(f"v_mul_f32 v{vL}, v{mreg(0)}, v{lreg(0)}")
    for w in range(1, 8):
        g(f"v_fmac_f32 v{vT0}, v{mreg(w)}, v{48+w}")
        g(f"v_fmac_f32 v{vL}, v{mreg(w)}, v{lreg(w)}")
    g(f"buffer_store_dword v{vT0}, v5, s[{srdW}:{srdW+3}], s{sT2} offen")
    g(f"s_cmp_eq_u32 s{sT0}, 0")
    g("s_cbranch_scc0 L_noml")
    g("s_mov_b64 exec, 1")
    g(f"buffer_store_dwordx2 v[{vM}:{vL}], v5, s[{srdW}:{srdW+3}], s{sT1} offen")
    g.lab("L_noml")
    if stamps:
        g("s_waitcnt vmcnt(0)")
        stamp()
        g("s_mov_b64 exec, 1")
        g("s_waitcnt lgkmcnt(0)")
        g(f"s_lshl_b32 s{sT0}, s2, 3")
        g(f"s_add_u32 s{sT0}, s{sT0}, s{sW}")
        g(f"s_lshl_b32 s{sT0}, s{sT0}, 6")
        g(f"s_add_u32 s{sT0}, s{sT0}, {hex(STAMP_BASE)}")
        g("v_mov_b32 v5, 0")
        for i in range(nst[0]):
            g(f"v_mov_b32 v{32+i}, s{sSt+2*i}")
        g(f"s_getreg_b32 s{sT1}, hwreg(HW_REG_XCC_ID)")
        g(f"v_mov_b32 v{32+6}, s{sT1}")
        g(f"s_getreg_b32 s{sT1}, hwreg(HW_REG_HW_ID)")
        g(f"v_mov_b32 v{32+7}, s{sT1}")
        g(f"buffer_store_dwordx4 v[32:35], v5, s[{srdW}:{srdW+3}], s{sT0} offen")
        g(f"buffer_store_dwordx4 v[36:39], v5, s[{srdW}:{srdW+3}], s{sT0} offen offset:16")
    g.lab("L_main_end")
    g("s_endpgm")

    g.raw(f".globl {comb}")
    g.raw(".p2align 8")
    g.raw(f".type {comb},@function")
    g.lab(comb)
    g("s_cmp_ge_u32 s2, 32")
    g("s_cbranch_scc1 L_comb_end")
    g("s_load_dwordx8 s[4:11], s[0:1], 32")
    g("v_lshlrev_b32 v1, 2, v0")
    g("v_add_u32 v2, 0x1000, v1")
    g("v_add_u32 v3, 0x2000, v1")
    g("v_add_u32 v4, 0x3000, v1")
    g("s_lshl_b32 s3, s2, 14")
    g("s_lshl_b32 s20, s2, 8")
    g(f"s_add_u32 s20, s20, {hex(ML_BASE)}")
    g("s_waitcnt lgkmcnt(0)")
    g("s_add_u32 s22, s10, s20")
    g("s_addc_u32 s23, s11, 0")
    for i in range(4):
        g(f"s_load_dwordx16 s[{32+16*i}:{47+16*i}], s[22:23], {64*i}")
    g("s_mov_b32 s12, s10")
    g("s_mov_b32 s13, s11")
    g(f"s_mov_b32 s14, {hex(WS_BYTES)}")
    g("s_mov_b32 s15, 0x20000")
    for j in range(32):
        g(f"buffer_load_dword v{8+j}, v{1 + j//8}, s[12:15], s3 offen offset:{(j%8)*512}")
    g("s_mov_b32 s16, s6")
    g("s_mov_b32 s17, s7")
    g("s_mov_b32 s18, 0x2000")
    g("s_mov_b32 s19, 0x20000")
    g("v_and_b32 v5, 63, v0")
    g("v_lshrrev_b32 v6, 2, v5")
    g("v_lshlrev_b32 v6, 3, v6")
    g("v_and_b32 v5, 3, v5")
    g("v_add_u32 v6, v6, v5")
    g("v_lshrrev_b32 v5, 6, v0")
    g("v_lshl_add_u32 v6, v5, 2, v6")
    g("v_lshlrev_b32 v6, 1, v6")
    g("s_lshl_b32 s3, s2, 8")
    g("s_waitcnt lgkmcnt(0)")
    g("v_mov_b32 v5, s32")
    for j in range(1, 32):
        g(f"v_max_f32 v5, s{32+2*j}, v5")
    for j in range(32):
        g(f"v_sub_f32 v{40+j}, s{32+2*j}, v5")
    for j in range(32):
        g(f"v_exp_f32 v{40+j}, v{40+j}")
    g("s_nop 0")
    g("v_mul_f32 v7, s33, v40")
    for j in range(1, 32):
        g(f"v_fmac_f32 v7, s{33+2*j}, v{40+j}")
    g("v_rcp_f32 v7, v7")
    g("s_waitcnt vmcnt(0)")
    g("v_mul_f32 v5, v8, v40")
    for j in range(1, 32):
        g(f"v_fmac_f32 v5, v{8+j}, v{40+j}")
    g("v_mul_f32 v5, v5, v7")
    g("v_cvt_pk_bf16_f32 v5, v5, v5")
    g("buffer_store_short v5, v6, s[16:19], s3 offen")
    g.lab("L_comb_end")
    g("s_endpgm")
    g.raw('.section .rodata,"a"')
    g.raw(".p2align 6")
    g.raw(kd(main, NV, 102))
    g.raw(".p2align 6")
    g.raw(kd(comb, 72, 102))
    return g.text()

if __name__ == "__main__":
    import argparse
    ap = argparse.ArgumentParser()
    ap.add_argument("-o", default=f"cdna_kernels/{NAME}.s")
    ap.add_argument("-S", type=int, default=3)
    ap.add_argument("--no-nt", action="store_true")
    ap.add_argument("--stamps", action="store_true")
    a = ap.parse_args()
    open(a.o, "w").write(gen(S=a.S, nt=not a.no_nt, stamps=a.stamps))
```

```python
import sys, struct, math

NAME = "standalone__paged_block_table_kv_pagedattention__decode"
KV_BYTES = 4100 * 32768
WS_BYTES = 537395200
O_BASE = 0
ML_BASE = 1 << 20
EP_BASE = ML_BASE + 0x8000
STAMP_BASE = 2 << 20
INC_LO, INC_HI = 0x7F4A7C15, 0x9E3779B9

def f32(x):
    return "0x%08x" % struct.unpack("<I", struct.pack("<f", x))[0]

HEADER = """; Kernarg layout for this problem (64 bytes, ptrs only, base s[0:1]):
"""

class G:
    def __init__(s):
        s.L = []
    def __call__(s, t):
        s.L.append("    " + t)
    def lab(s, t):
        s.L.append(t + ":")
    def raw(s, t):
        s.L.append(t)
    def text(s):
        return "\n".join(s.L) + "\n"

def kd(name, vgpr, sgpr):
    acc = (vgpr + 3) // 4 * 4
    return f""".amdhsa_kernel {name}
  .amdhsa_next_free_vgpr {vgpr}
  .amdhsa_next_free_sgpr {sgpr}
  .amdhsa_accum_offset {acc}
  .amdhsa_group_segment_fixed_size 0
  .amdhsa_kernarg_size 64
  .amdhsa_user_sgpr_count 2
  .amdhsa_user_sgpr_kernarg_segment_ptr 1
  .amdhsa_system_sgpr_workgroup_id_x 1
.end_amdhsa_kernel
"""

def gen(WA=6, WB=8, bmask=0x00f000f0, pol="nt", stamps=False, dry=True, slp=2, diag="", lp="sc1", sp="sc1", d0=0):
    g = G()
    pol = (" " + pol) if pol else ""
    LST = 7
    STRIDE_B = 128
    MAXB = 32
    MLO = 8192
    WLO = 8192 + 128
    vK0, vK1, vV0, vV1 = 1, 2, 3, 4
    vMLa = 5
    vBT = 6
    vL16 = 7
    vQ = 8
    vA0, vA1 = 12, 16
    vM, vL, vSc, vG4 = 20, 21, 22, 23
    vSelAlo, vSelBlo, vSelAhi, vSelBhi = 24, 25, 26, 27
    vT0, vT1, vT2, vNEG = 28, 29, 30, 31
    vD = 32
    vKB = 64
    vVB = 96
    NV = 128
    sW, sH, sJ, sU = 3, 36, 37, 38
    sK, sN, sRem, sT0, sT1, sT2 = 39, 40, 41, 42, 43, 44
    sCL = 45
    sB0, sB1, sC0, sC1 = 46, 47, 60, 61
    srdK, srdV, srdW = 48, 52, 56
    sPub, sPubML = 62, 63
    sTag = 20
    sEp = 22
    sSt = 64
    def stamp(i):
        if stamps:
            g(f"s_memrealtime s[{sSt + 2*i}:{sSt + 2*i + 1}]")
    def dump_stamps(n):
        if not stamps:
            return
        g("s_mov_b64 exec, 1")
        g("s_waitcnt lgkmcnt(0)")
        g(f"s_mul_i32 s{sT0}, s2, 5")
        g(f"s_add_u32 s{sT0}, s{sT0}, s{sW}")
        g(f"s_lshl_b32 s{sT0}, s{sT0}, 6")
        g(f"s_add_u32 s{sT0}, s{sT0}, {hex(STAMP_BASE)}")
        g("v_mov_b32 v5, 0")
        for i in range(n):
            g(f"v_mov_b32 v{32+i}, s{sSt+2*i}")
        g(f"s_getreg_b32 s{sT1}, hwreg(HW_REG_XCC_ID)")
        g(f"v_mov_b32 v{32+6}, s{sT1}")
        g(f"s_getreg_b32 s{sT1}, hwreg(HW_REG_HW_ID)")
        g(f"v_mov_b32 v{32+7}, s{sT1}")
        g(f"buffer_store_dwordx4 v[32:35], v5, s[{srdW}:{srdW+3}], s{sT0} offen")
        g(f"buffer_store_dwordx4 v[36:39], v5, s[{srdW}:{srdW+3}], s{sT0} offen offset:16")
    def ws_srd():
        g(f"s_mov_b32 s{srdW}, s18")
        g(f"s_mov_b32 s{srdW+1}, s19")
        g(f"s_mov_b32 s{srdW+2}, {hex(WS_BYTES)}")
        g(f"s_mov_b32 s{srdW+3}, 0x20000")
    def epoch_load():
        g(f"s_lshl_b32 s{sEp}, s{sH}, 7")
        g(f"s_add_u32 s{sEp}, s{sEp}, {hex(EP_BASE)}")
        g(f"s_add_u32 s{sEp}, s18, s{sEp}")
        g(f"s_addc_u32 s{sEp+1}, s19, 0")
        g(f"s_load_dwordx2 s[{sTag}:{sTag+1}], s[{sEp}:{sEp+1}], 0")
    def epoch_bump():
        g(f"s_add_u32 s{sTag}, s{sTag}, {hex(INC_LO)}")
        g(f"s_addc_u32 s{sTag+1}, s{sTag+1}, {hex(INC_HI)}")
    main = NAME + "_kernel"
    g.raw(HEADER.rstrip("\n"))
    g.raw(f"; @launch grid=(256,1,1) block=(320,1,1) lds={WLO+128}")
    g.raw('.amdgcn_target "amdgcn-amd-amdhsa--gfx950"')
    g.raw(".text")
    g.raw(f".globl {main}")
    g.raw(".p2align 8")
    g.raw(f".type {main},@function")
    g.lab(main)
    g("s_cmp_ge_u32 s2, 0x100")
    g("s_cbranch_scc1 L_end")
    g("s_load_dwordx16 s[4:19], s[0:1], 0")
    stamp(0)
    g("v_lshrrev_b32 v5, 6, v0")
    g(f"v_and_b32 v{vT2}, 63, v0")
    g(f"v_readfirstlane_b32 s{sW}, v5")
    g(f"s_bfe_u32 s{sH}, s2, 0x30003")
    g(f"s_and_b32 s{sJ}, s2, 7")
    g(f"s_lshr_b32 s{sT0}, s2, 6")
    g(f"s_lshl_b32 s{sT0}, s{sT0}, 3")
    g(f"s_or_b32 s{sJ}, s{sJ}, s{sT0}")
    g(f"s_cmp_eq_u32 s{sW}, 4")
    g("s_cbranch_scc1 L_helper")
    g(f"s_lshl_b32 s{sU}, s{sW}, 5")
    g(f"s_add_u32 s{sU}, s{sU}, s{sJ}")
    g(f"s_lshl_b32 s{sT0}, s{sU}, 2")
    g(f"s_lshl_b32 s{sT1}, s{sH}, 8")
    g(f"s_lshl_b32 s{sT2}, s{sH}, 10")
    g(f"v_and_b32 v{vD}, {MAXB-1}, v{vT2}")
    g(f"v_lshlrev_b32 v{vD}, {LST+2}, v{vD}")
    g(f"v_add_u32 v{vD}, s{sT0}, v{vD}")
    g(f"v_lshrrev_b32 v5, 4, v{vT2}")
    g(f"v_and_b32 v{vD+1}, 3, v{vT2}")
    g(f"v_lshlrev_b32 v{vD+2}, 4, v{vD+1}")
    g(f"v_lshl_add_u32 v{vD+2}, v5, 6, v{vD+2}")
    g(f"v_bfe_u32 v{vT0}, v{vT2}, 2, 2")
    g(f"v_lshl_add_u32 v{vT1}, v{vT0}, 8, v{vD+2}")
    g(f"v_add_u32 v{vT1}, s{sT2}, v{vT1}")
    g("s_waitcnt lgkmcnt(0)")
    g(f"global_load_dword v{vBT}, v{vD}, s[10:11]")
    g(f"s_load_dword s{sCL}, s[12:13], 0")
    g(f"global_load_dwordx4 v[{vQ}:{vQ+3}], v{vT1}, s[4:5]")
    g(f"v_lshl_add_u32 v{vK0}, v{vT0}, 13, v{vD+2}")
    g(f"v_and_b32 v{vD+3}, 15, v{vT2}")
    g(f"v_lshlrev_b32 v{vD+3}, 4, v{vD+3}")
    g(f"v_lshl_add_u32 v{vV0}, v5, 13, v{vD+3}")
    g(f"v_add_u32 v{vK1}, 0x1000, v{vK0}")
    g(f"v_add_u32 v{vV1}, 0x1000, v{vV0}")
    g(f"s_add_u32 s{srdK}, s6, s{sT1}")
    g(f"s_addc_u32 s{srdK+1}, s7, 0")
    g(f"s_sub_u32 s{srdK+2}, {hex(KV_BYTES)}, s{sT1}")
    g(f"s_mov_b32 s{srdK+3}, 0x20000")
    g(f"s_add_u32 s{srdV}, s8, s{sT1}")
    g(f"s_addc_u32 s{srdV+1}, s9, 0")
    g(f"s_mov_b32 s{srdV+2}, s{srdK+2}")
    g(f"s_mov_b32 s{srdV+3}, 0x20000")
    ws_srd()
    g(f"s_lshl_b32 s{sPubML}, s{sH}, 5")
    g(f"s_add_u32 s{sPubML}, s{sPubML}, s{sJ}")
    g(f"s_lshl_b32 s{sPub}, s{sPubML}, 12")
    g(f"s_lshl_b32 s{sT0}, s{sW}, 8")
    g(f"s_add_u32 s{sPub}, s{sPub}, s{sT0}")
    g(f"s_lshl_b32 s{sPubML}, s{sPubML}, 7")
    g(f"s_add_u32 s{sPubML}, s{sPubML}, {hex(ML_BASE)}")
    g(f"v_lshlrev_b32 v{vL16}, 4, v{vT2}")
    g(f"v_lshlrev_b32 v{vG4}, 2, v5")
    g(f"v_mov_b32 v{vSc}, {f32(128 ** -0.5 * math.log2(math.e))}")
    g(f"v_mov_b32 v{vNEG}, 0xff800000")
    g(f"v_mov_b32 v{vM}, {f32(-1e30)}")
    g(f"v_mov_b32 v{vL}, 0")
    for r in range(8):
        g(f"v_mov_b32 v{vA0+r}, 0")
    g(f"s_lshl_b32 s{sT0}, s{sW}, 3")
    g(f"v_lshl_add_u32 v{vMLa}, v{vT2}, 3, s{sT0}")
    g(f"v_mov_b32 v{vT0}, 0x0c0c0c0c")
    def sel(dst, u_even, pat_even, pat_odd):
        g(f"v_mov_b32 v{vD+4}, {pat_even}")
        g(f"v_mov_b32 v{vD+5}, {pat_odd}")
        g(f"v_cmp_eq_u32 vcc, {u_even}, v{vD+1}")
        g("s_nop 1")
        g(f"v_cndmask_b32 v{dst}, v{vT0}, v{vD+4}, vcc")
        g(f"v_cmp_eq_u32 vcc, {u_even+1}, v{vD+1}")
        g("s_nop 1")
        g(f"v_cndmask_b32 v{dst}, v{dst}, v{vD+5}, vcc")
    sel(vSelAlo, 0, "0x0c0c0100", "0x01000c0c")
    sel(vSelBlo, 2, "0x0c0c0100", "0x01000c0c")
    sel(vSelAhi, 0, "0x0c0c0302", "0x03020c0c")
    sel(vSelBhi, 2, "0x0c0c0302", "0x03020c0c")
    g(f"v_mov_b32 v{vD+4}, 0x80000000")
    g(f"s_mov_b32 s{sK}, 0")
    g(f"s_lshl_b32 s{sT2}, s{sH}, 2")
    g(f"s_add_u32 s{sT2}, s{sT2}, s{sW}")
    g("s_waitcnt lgkmcnt(0)")
    epoch_load()
    g(f"s_max_i32 s{sCL}, s{sCL}, 0")
    g(f"s_min_i32 s{sCL}, s{sCL}, 0x10000")
    g(f"s_add_u32 s{sN}, s{sCL}, 15")
    g(f"s_lshr_b32 s{sN}, s{sN}, 4")
    g(f"s_add_u32 s{sN}, s{sN}, {STRIDE_B-1}")
    g(f"s_sub_u32 s{sN}, s{sN}, s{sU}")
    g(f"s_lshr_b32 s{sN}, s{sN}, {LST}")
    g(f"s_lshl_b32 s{sT0}, s{sU}, 4")
    g(f"s_sub_i32 s{sRem}, s{sCL}, s{sT0}")
    g(f"v_cmp_gt_u32 vcc, s{sN}, v{vT2}")
    g(f"s_cmp_eq_u32 s{sN}, 0")
    g("s_cbranch_scc1 L_epi")
    if WA != WB:
        g(f"s_bitcmp1_b32 {hex(bmask)}, s{sT2}")
    g("s_waitcnt vmcnt(1)")
    stamp(1)
    g(f"v_lshlrev_b32 v{vBT}, 15, v{vBT}")
    g(f"v_cndmask_b32 v{vBT}, v{vD+4}, v{vBT}, vcc")
    g("s_nop 0")
    g(f"v_readlane_b32 s{sB0}, v{vBT}, 0")
    g(f"v_readlane_b32 s{sB1}, v{vBT}, 1")
    g("s_nop 3")

    def load(pos, nxt):
        isK = pos < 8
        m = pos & 7
        srd = srdK if isK else srdV
        o0, o1 = (vK0, vK1) if isK else (vV0, vV1)
        base = vKB if isK else vVB
        b0, b1 = (sB0, sB1) if nxt else (sC0, sC1)
        so = b0 if m < 4 else b1
        vo = o0 if (m & 2) == 0 else o1
        off = " offset:2048" if (m & 1) else ""
        g(f"buffer_load_dwordx4 v[{base+4*m}:{base+4*m+3}], v{vo}, s[{srd}:{srd+3}], s{so} offen{off}{pol}")

    D = lambda m, r=0: vD + 4 * m + r
    def loop(W, sfx):
        def after(p):
            load((p + W) % 16, (p + W) // 16)
        KB, VB = vKB, vVB
        g.lab(f"L_loop{sfx}")
        g(f"s_mov_b64 s[{sC0}:{sC1}], s[{sB0}:{sB1}]")
        g(f"s_add_u32 s{sT0}, s{sK}, 2")
        g(f"s_add_u32 s{sT1}, s{sK}, 3")
        g(f"v_readlane_b32 s{sB0}, v{vBT}, s{sT0}")
        g(f"v_readlane_b32 s{sB1}, v{vBT}, s{sT1}")
        if W == 16:
            g("s_nop 2")
        for m in range(8):
            g(f"s_waitcnt vmcnt({W-1})")
            g(f"v_mfma_f32_16x16x32_bf16 v[{D(m)}:{D(m,3)}], v[{KB+4*m}:{KB+4*m+3}], v[{vQ}:{vQ+3}], 0")
            after(m)
        for r in range(4):
            for m in range(8):
                op = "v_mul_f32_dpp" if r == 0 else "v_fmac_f32_dpp"
                g(f"{op} v{D(m)}, v{D(m,r)}, v{vSc} quad_perm:[{r},{r},{r},{r}] row_mask:0xf bank_mask:0xf")
        g(f"s_cmp_ge_i32 s{sRem}, {16*STRIDE_B+16}")
        g(f"s_cbranch_scc1 L_nomask{sfx}")
        for m in range(8):
            cm = 16 * STRIDE_B * (m >> 2) + (m & 3)
            g(f"s_sub_i32 s{sT0}, s{sRem}, {cm}")
            g(f"v_cmp_gt_i32 vcc, s{sT0}, v{vG4}")
            g("s_nop 1")
            g(f"v_cndmask_b32 v{D(m)}, v{vNEG}, v{D(m)}, vcc")
        g.lab(f"L_nomask{sfx}")
        g(f"v_max3_f32 v{vT0}, v{D(0)}, v{D(1)}, v{D(2)}")
        g(f"v_max3_f32 v{vT1}, v{D(3)}, v{D(4)}, v{D(5)}")
        g(f"v_max3_f32 v{vT0}, v{vT0}, v{D(6)}, v{D(7)}")
        g(f"v_max3_f32 v{vT0}, v{vT0}, v{vT1}, v{vM}")
        g(f"v_mov_b32 v{vT1}, v{vT0}")
        g("s_nop 1")
        g(f"v_permlane16_swap_b32 v{vT0}, v{vT1}")
        g(f"v_max_f32 v{vT0}, v{vT0}, v{vT1}")
        g(f"v_mov_b32 v{vT1}, v{vT0}")
        g("s_nop 1")
        g(f"v_permlane32_swap_b32 v{vT0}, v{vT1}")
        g(f"v_max_f32 v{vT0}, v{vT0}, v{vT1}")
        g(f"v_sub_f32 v{vT1}, v{vM}, v{vT0}")
        g(f"v_exp_f32 v{vT1}, v{vT1}")
        g(f"v_mov_b32 v{vM}, v{vT0}")
        for m in range(8):
            g(f"v_sub_f32 v{D(m)}, v{D(m)}, v{vT0}")
        for m in range(8):
            g(f"v_exp_f32 v{D(m)}, v{D(m)}")
            if m % 2 == 1:
                q = m // 2
                g(f"v_mov_b32_dpp v{vT2}, v{vT1} row_newbcast:{4*q} row_mask:{hex(1<<q)} bank_mask:0xf")
        g(f"v_fma_f32 v{vL}, v{vL}, v{vT1}, v{D(0)}")
        for m in range(1, 8):
            g(f"v_add_f32 v{vL}, v{vL}, v{D(m)}")
        for m in range(0, 8, 2):
            g(f"v_cvt_pk_bf16_f32 v{D(m,1)}, v{D(m)}, v{D(m+1)}")
        for r in range(8):
            g(f"v_mul_f32 v{vA0+r}, v{vA0+r}, v{vT2}")
        for m in range(0, 8, 2):
            g(f"v_perm_b32 v{D(m,2)}, v{D(m,1)}, v{D(m,1)}, v{vSelAlo}")
            g(f"v_perm_b32 v{D(m,3)}, v{D(m,1)}, v{D(m,1)}, v{vSelBlo}")
            g(f"v_perm_b32 v{D(m+1,2)}, v{D(m,1)}, v{D(m,1)}, v{vSelAhi}")
            g(f"v_perm_b32 v{D(m+1,3)}, v{D(m,1)}, v{D(m,1)}, v{vSelBhi}")
        g(f"s_add_u32 s{sK}, s{sK}, 2")
        g(f"s_sub_i32 s{sRem}, s{sRem}, {hex(32*STRIDE_B)}")
        for m in range(8):
            g(f"s_waitcnt vmcnt({W-1})")
            g(f"v_mfma_f32_16x16x16_bf16 v[{vA0}:{vA0+3}], v[{D(m,2)}:{D(m,3)}], v[{VB+4*m}:{VB+4*m+1}], v[{vA0}:{vA0+3}]")
            g(f"v_mfma_f32_16x16x16_bf16 v[{vA1}:{vA1+3}], v[{D(m,2)}:{D(m,3)}], v[{VB+4*m+2}:{VB+4*m+3}], v[{vA1}:{vA1+3}]")
            after(8 + m)
        g(f"s_cmp_lt_u32 s{sK}, s{sN}")
        g(f"s_cbranch_scc1 L_loop{sfx}")

    lo, hi = min(WA, WB), max(WA, WB)
    assert WA <= WB
    for p in range(lo):
        load(p, 1)
    if WA != WB:
        g("s_cbranch_scc0 L_loopA")
        for p in range(lo, hi):
            load(p, 1)
        loop(WB, "B")
        g("s_branch L_epi")
    loop(WA, "A")

    g.lab("L_epi")
    g("s_waitcnt lgkmcnt(0)")
    epoch_bump()
    stamp(3)
    g(f"v_mov_b32 v{vT1}, v{vL}")
    g(f"s_lshl_b32 s{sT0}, s{sW}, 11")
    g(f"v_add_u32 v{vT0}, s{sT0}, v{vL16}")
    g(f"v_permlane16_swap_b32 v{vL}, v{vT1}")
    g(f"v_add_f32 v{vL}, v{vL}, v{vT1}")
    g(f"v_mov_b32 v{vT1}, v{vL}")
    g(f"ds_write_b128 v{vT0}, v[{vA0}:{vA0+3}]")
    g(f"ds_write_b128 v{vT0}, v[{vA1}:{vA1+3}] offset:1024")
    g(f"v_permlane32_swap_b32 v{vL}, v{vT1}")
    g(f"v_add_f32 v{vL}, v{vL}, v{vT1}")
    g("s_mov_b64 exec, 0x1111")
    g(f"ds_write_b64 v{vMLa}, v[{vM}:{vL}] offset:{MLO}")
    g("s_mov_b64 exec, -1")
    g(f"v_and_b32 v{vD}, 63, v0")
    g(f"v_lshrrev_b32 v{vD+1}, 4, v{vD}")
    g(f"v_lshlrev_b32 v{vD+2}, 5, v{vD+1}")
    g(f"v_bfe_u32 v{vD+3}, v{vD}, 2, 2")
    g(f"v_lshlrev_b32 v{vD+3}, 4, v{vD+3}")
    g(f"v_lshl_add_u32 v{vD+3}, v{vD+1}, 8, v{vD+3}")
    g(f"v_bfe_u32 v{vD+4}, v{vD}, 1, 1")
    g(f"v_lshl_add_u32 v{vD+3}, v{vD+4}, 10, v{vD+3}")
    g(f"v_and_b32 v{vD+4}, 1, v{vD}")
    g(f"v_lshl_add_u32 v{vD+3}, v{vD+4}, 3, v{vD+3}")
    g(f"s_lshl_b32 s{sT0}, s{sW}, 6")
    g(f"v_add_u32 v{vD+3}, s{sT0}, v{vD+3}")
    g(f"v_and_b32 v{vD+4}, 15, v{vD}")
    g(f"v_lshlrev_b32 v{vD+4}, 4, v{vD+4}")
    g(f"v_lshl_add_u32 v{vD+4}, v{vD+1}, 10, v{vD+4}")
    g(f"v_mov_b32 v{vA0+2}, s{sTag}")
    g(f"v_mov_b32 v{vA0+3}, s{sTag+1}")
    g(f"v_mov_b32 v{vA1+2}, s{sTag}")
    g(f"v_mov_b32 v{vA1+3}, s{sTag+1}")
    g(f"v_lshrrev_b32 v{vD+5}, 3, v{vD}")
    g(f"v_lshlrev_b32 v{vD+5}, 4, v{vD+5}")
    g("s_waitcnt lgkmcnt(0)")
    g("s_barrier")
    R = vD + 8
    g(f"ds_read_b128 v[{R}:{R+3}], v{vD+2} offset:{MLO}")
    g(f"ds_read_b128 v[{R+4}:{R+7}], v{vD+2} offset:{MLO+16}")
    for w in range(4):
        g(f"ds_read_b64 v[{R+8+2*w}:{R+9+2*w}], v{vD+3} offset:{2048*w}")
    g("s_waitcnt lgkmcnt(4)")
    mreg = lambda w: R + 2 * w
    lreg = lambda w: R + 2 * w + 1
    g(f"v_max3_f32 v{vT0}, v{mreg(0)}, v{mreg(1)}, v{mreg(2)}")
    g(f"v_max_f32 v{vA1}, v{vT0}, v{mreg(3)}")
    for w in range(4):
        g(f"v_sub_f32 v{mreg(w)}, v{mreg(w)}, v{vA1}")
    for w in range(4):
        g(f"v_exp_f32 v{mreg(w)}, v{mreg(w)}")
    g("s_waitcnt lgkmcnt(0)")
    g(f"v_mul_f32 v{vA0}, v{mreg(0)}, v{R+8}")
    g(f"v_mul_f32 v{vA0+1}, v{mreg(0)}, v{R+9}")
    for w in range(1, 4):
        g(f"v_fmac_f32 v{vA0}, v{mreg(w)}, v{R+8+2*w}")
        g(f"v_fmac_f32 v{vA0+1}, v{mreg(w)}, v{R+9+2*w}")
    if "nopub" not in diag:
        g(f"buffer_store_dwordx4 v[{vA0}:{vA0+3}], v{vD+4}, s[{srdW}:{srdW+3}], s{sPub} offen {sp}")
    g(f"s_cmp_eq_u32 s{sW}, 0")
    g("s_cbranch_scc0 L_pdone")
    g(f"v_mul_f32 v{vA1+1}, v{mreg(0)}, v{lreg(0)}")
    for w in range(1, 4):
        g(f"v_fmac_f32 v{vA1+1}, v{mreg(w)}, v{lreg(w)}")
    g("s_mov_b32 exec_lo, 0x01010101")
    g("s_mov_b32 exec_hi, 0x01010101")
    if "nopub" not in diag:
        g(f"buffer_store_dwordx4 v[{vA1}:{vA1+3}], v{vD+5}, s[{srdW}:{srdW+3}], s{sPubML} offen {sp}")
    g.lab("L_pdone")
    if stamps:
        stamp(2)
        g("s_waitcnt vmcnt(0)")
        stamp(4)
        dump_stamps(5)
    g.lab("L_end")
    g("s_endpgm")

    vLane = vT2
    hO = 64
    hML = 32
    hW = 48
    hOffO, hOffML, hOffOut, hLw, hLr = 1, 2, 4, 6, 7
    srdO = srdK
    sMLr, sOut, sDry, sCnt = 39, 41, 62, 63
    sO = [46, 47, 60, 61]
    sPm = [24, 26, 28, 30, 32]
    g.raw(".p2align 6")
    g.lab("L_helper")
    g(f"v_lshrrev_b32 v12, 3, v{vLane}")
    g(f"v_and_b32 v13, 7, v{vLane}")
    g(f"v_lshlrev_b32 v14, 4, v13")
    g(f"v_lshl_add_u32 v{hOffO}, v12, 14, v14")
    g(f"v_and_b32 v14, 31, v{vLane}")
    g(f"v_lshlrev_b32 v{hOffML}, 7, v14")
    g(f"v_lshlrev_b32 v{hLw}, 2, v14")
    g(f"v_lshlrev_b32 v{hLr}, 4, v12")
    g(f"v_lshlrev_b32 v{hOffOut}, 2, v13")
    g("s_waitcnt lgkmcnt(0)")
    epoch_load()
    ws_srd()
    g(f"s_mov_b32 s{srdO}, s14")
    g(f"s_mov_b32 s{srdO+1}, s15")
    g(f"s_mov_b32 s{srdO+2}, 0x2000")
    g(f"s_mov_b32 s{srdO+3}, 0x20000")
    g(f"s_lshl_b32 s{sT1}, s{sH}, 17")
    g(f"s_lshl_b32 s{sT2}, s{sJ}, 7")
    g(f"s_add_u32 s{sO[0]}, s{sT1}, s{sT2}")
    for i in range(1, 4):
        g(f"s_add_u32 s{sO[i]}, s{sO[0]}, {hex(4096*i)}")
    g(f"s_lshr_b32 s{sT0}, s{sJ}, 3")
    g(f"s_lshl_b32 s{sT0}, s{sT0}, 5")
    g(f"s_lshl_b32 s{sMLr}, s{sH}, 12")
    g(f"s_add_u32 s{sMLr}, s{sMLr}, s{sT0}")
    g(f"s_add_u32 s{sMLr}, s{sMLr}, {hex(ML_BASE)}")
    g(f"s_lshl_b32 s{sOut}, s{sH}, 10")
    g(f"s_lshl_b32 s{sT0}, s{sJ}, 5")
    g(f"s_add_u32 s{sOut}, s{sOut}, s{sT0}")
    g("s_waitcnt lgkmcnt(0)")
    epoch_bump()
    stamp(1)
    if "nohelp" in diag:
        g("s_barrier")
        for i in range(2, 5):
            stamp(i)
        dump_stamps(5)
        g("s_endpgm")
    if dry:
        g(f"s_mov_b32 s{sDry}, 1")
        g(f"s_mov_b32 s{sCnt}, 0x200000")
        g(f"s_mov_b32 s{srdW+2}, 0")
        g("s_branch L_go")
    g.lab("L_real")
    g(f"s_mov_b32 s{srdW+2}, {hex(WS_BYTES)}")
    g(f"s_mov_b32 s{sDry}, 0")
    g(f"s_mov_b32 s{sCnt}, 0")
    g("s_barrier")
    stamp(2)
    if d0:
        g(f"s_sleep {d0}")
    g.lab("L_go")
    for i in range(4):
        g(f"s_mov_b64 s[{sPm[i]}:{sPm[i]+1}], -1")
    g(f"s_mov_b32 s{sPm[4]}, -1")
    g(f"s_mov_b32 s{sPm[4]+1}, 0")
    g.lab("L_poll")
    g(f"s_mov_b64 exec, s[{sPm[4]}:{sPm[4]+1}]")
    g("s_cbranch_execz L_sk4")
    g(f"buffer_load_dwordx4 v[{hML}:{hML+3}], v{hOffML}, s[{srdW}:{srdW+3}], s{sMLr} offen {lp}")
    g.lab("L_sk4")
    for i in range(4):
        g(f"s_mov_b64 exec, s[{sPm[i]}:{sPm[i]+1}]")
        g(f"s_cbranch_execz L_sk{i}")
        g(f"buffer_load_dwordx4 v[{hO+4*i}:{hO+4*i+3}], v{hOffO}, s[{srdW}:{srdW+3}], s{sO[i]} offen {lp}")
        g.lab(f"L_sk{i}")
    g("s_mov_b32 exec_lo, -1")
    g("s_mov_b32 exec_hi, 0")
    g(f"s_add_u32 s{sCnt}, s{sCnt}, 1")
    g("s_waitcnt vmcnt(0)")
    g(f"v_cmp_ne_u64 s[{sPm[4]}:{sPm[4]+1}], s[{sTag}:{sTag+1}], v[{hML+2}:{hML+3}]")
    g("s_mov_b64 exec, -1")
    for i in range(4):
        g(f"v_cmp_ne_u64 s[{sPm[i]}:{sPm[i]+1}], s[{sTag}:{sTag+1}], v[{hO+4*i+2}:{hO+4*i+3}]")
    g(f"s_cmp_ge_u32 s{sCnt}, 0x200000")
    g("s_cbranch_scc1 L_got")
    g(f"s_or_b64 s[34:35], s[{sPm[0]}:{sPm[0]+1}], s[{sPm[1]}:{sPm[1]+1}]")
    g(f"s_or_b64 s[34:35], s[34:35], s[{sPm[2]}:{sPm[2]+1}]")
    g(f"s_or_b64 s[34:35], s[34:35], s[{sPm[3]}:{sPm[3]+1}]")
    g(f"s_or_b64 s[34:35], s[34:35], s[{sPm[4]}:{sPm[4]+1}]")
    g("s_cbranch_scc0 L_got")
    if slp:
        g(f"s_sleep {slp}")
    g("s_branch L_poll")
    g.lab("L_got")
    stamp(3)
    def allreduce32(op, r, t):
        for sh in (1, 2, 4, 8):
            g(f"{op}_dpp v{r}, v{r}, v{r} row_ror:{sh} row_mask:0xf bank_mask:0xf")
            if sh != 8:
                g("s_nop 1")
        g(f"v_mov_b32 v{t}, v{r}")
        g("s_nop 1")
        g(f"v_permlane16_swap_b32 v{r}, v{t}")
        g(f"{op} v{r}, v{r}, v{t}")
    g(f"v_mov_b32 v12, v{hML}")
    g("s_nop 1")
    allreduce32("v_max_f32", 12, 13)
    g(f"v_sub_f32 v15, v{hML}, v12")
    g(f"v_exp_f32 v15, v15")
    g("s_mov_b32 exec_hi, 0")
    g(f"v_mul_f32 v14, v15, v{hML+1}")
    g(f"ds_write_b32 v{hLw}, v15 offset:{WLO}")
    g("s_mov_b32 exec_hi, -1")
    g(f"ds_read_b128 v[{hW}:{hW+3}], v{hLr} offset:{WLO}")
    allreduce32("v_add_f32", 14, 13)
    g("v_rcp_f32 v14, v14")
    g("s_waitcnt lgkmcnt(0)")
    g(f"v_mul_f32 v16, v{hW}, v{hO}")
    g(f"v_mul_f32 v17, v{hW}, v{hO+1}")
    for i in range(1, 4):
        g(f"v_fmac_f32 v16, v{hW+i}, v{hO+4*i}")
        g(f"v_fmac_f32 v17, v{hW+i}, v{hO+4*i+1}")
    g("s_nop 1")
    g("v_permlane32_swap_b32 v16, v17")
    g("v_add_f32 v16, v16, v17")
    g("v_mov_b32 v17, v16")
    g("s_nop 1")
    g("v_permlane16_swap_b32 v16, v17")
    g("v_add_f32 v16, v16, v17")
    g("s_nop 1")
    g("v_add_f32_dpp v16, v16, v16 row_ror:8 row_mask:0xf bank_mask:0xf")
    g("v_mov_b32 v17, v16")
    g("s_nop 1")
    g("v_permlane32_swap_b32 v16, v17")
    g("v_mul_f32 v16, v16, v14")
    g("v_mul_f32 v17, v17, v14")
    g("v_cvt_pk_bf16_f32 v16, v16, v17")
    if dry:
        g(f"s_cmp_eq_u32 s{sDry}, 1")
        g("s_cbranch_scc1 L_real")
    g("s_mov_b64 exec, 0xff")
    g(f"buffer_store_dword v16, v{hOffOut}, s[{srdO}:{srdO+3}], s{sOut} offen")
    g(f"s_cmp_eq_u32 s{sJ}, 0")
    g("s_cbranch_scc0 L_hdone")
    g("s_mov_b64 exec, 1")
    g(f"v_mov_b32 v12, s{sTag}")
    g(f"v_mov_b32 v13, s{sTag+1}")
    g("v_mov_b32 v14, 0")
    g(f"global_store_dwordx2 v14, v[12:13], s[{sEp}:{sEp+1}]")
    g.lab("L_hdone")
    if stamps:
        stamp(4)
        g(f"s_mov_b32 s{sSt+10}, s{sCnt}")
        dump_stamps(6)
    g("s_endpgm")
    g.raw('.section .rodata,"a"')
    g.raw(".p2align 6")
    g.raw(kd(main, NV, 96))
    return g.text()

if __name__ == "__main__":
    import argparse
    ap = argparse.ArgumentParser()
    ap.add_argument("-o", default=f"cdna_kernels/{NAME}.s")
    ap.add_argument("--wa", type=int, default=6)
    ap.add_argument("--wb", type=int, default=6)
    ap.add_argument("--bmask", default="0x00f000f0")
    ap.add_argument("--pol", default="nt")
    ap.add_argument("--stamps", action="store_true")
    ap.add_argument("--nodry", action="store_true")
    ap.add_argument("--slp", type=int, default=2)
    ap.add_argument("--diag", default="")
    ap.add_argument("--d0", type=int, default=0)
    ap.add_argument("--lp", default="sc1")
    ap.add_argument("--sp", default="sc1")
    a = ap.parse_args()
    open(a.o, "w").write(gen(WA=a.wa, WB=a.wb, bmask=int(a.bmask, 16), pol=a.pol, stamps=a.stamps, dry=not a.nodry, slp=a.slp, diag=a.diag, d0=a.d0, lp=a.lp, sp=a.sp))
```

```python
import sys, struct, math

NAME = "standalone__paged_block_table_kv_pagedattention__decode"
KV_BYTES = 4100 * 32768
WS_BYTES = 537395200
O_BASE = 0
ML_BASE = 1 << 20
EP_BASE = ML_BASE + 0x8000
STAMP_BASE = 2 << 20
INC_LO, INC_HI = 0x7F4A7C15, 0x9E3779B9

def f32(x):
    return "0x%08x" % struct.unpack("<I", struct.pack("<f", x))[0]

HEADER = """; Kernarg layout for this problem (64 bytes, ptrs only, base s[0:1]):
"""

class G:
    def __init__(s):
        s.L = []
    def __call__(s, t):
        s.L.append("    " + t)
    def lab(s, t):
        s.L.append(t + ":")
    def raw(s, t):
        s.L.append(t)
    def text(s):
        return "\n".join(s.L) + "\n"

def kd(name, vgpr, sgpr):
    acc = (vgpr + 3) // 4 * 4
    return f""".amdhsa_kernel {name}
  .amdhsa_next_free_vgpr {vgpr}
  .amdhsa_next_free_sgpr {sgpr}
  .amdhsa_accum_offset {acc}
  .amdhsa_group_segment_fixed_size 0
  .amdhsa_kernarg_size 64
  .amdhsa_user_sgpr_count 2
  .amdhsa_user_sgpr_kernarg_segment_ptr 1
  .amdhsa_system_sgpr_workgroup_id_x 1
.end_amdhsa_kernel
"""

def gen(WA=6, WB=8, bmask=0x00f000f0, pol="nt", stamps=False, dry=True, slp=2, diag="", lp="sc1", sp="sc1", d0=0, dbg=False):
    g = G()
    pol = (" " + pol) if pol else ""
    LST = 7
    STRIDE_B = 128
    MAXB = 32
    MLO = 8192
    WLO = 8192 + 128
    vK0, vK1, vV0, vV1 = 1, 2, 3, 4
    vMLa = 5
    vBT = 6
    vL16 = 7
    vQ = 8
    vA0, vA1 = 12, 16
    vM, vL, vSc, vG4 = 20, 21, 22, 23
    vSelAlo, vSelBlo, vSelAhi, vSelBhi = 24, 25, 26, 27
    vT0, vT1, vT2, vNEG = 28, 29, 30, 31
    vD = 32
    vKB = 64
    vVB = 96
    NV = 128
    sW, sH, sJ, sU = 3, 36, 37, 38
    sK, sN, sRem, sT0, sT1, sT2 = 39, 40, 41, 42, 43, 44
    sCL = 45
    sB0, sB1, sC0, sC1 = 46, 47, 60, 61
    srdK, srdV, srdW = 48, 52, 56
    sPub, sPubML = 62, 63
    sTag = 20
    sEp = 22
    sSt = 64
    def stamp(i):
        if stamps:
            g(f"s_memrealtime s[{sSt + 2*i}:{sSt + 2*i + 1}]")
    def dump_stamps(n, helper=False):
        if not stamps:
            return
        if dbg:
            g("s_mov_b64 exec, 1")
            g("s_waitcnt lgkmcnt(0)")
            g("v_mov_b32 v5, 0")
            g(f"s_not_b32 s{sT0}, s{sSt}")
            g(f"v_mov_b32 v32, s{sT0}")
            g("global_atomic_umax v5, v32, s[16:17]")
            for i in range(5):
                g(f"v_mov_b32 v{33+i}, s{sSt+2*i}")
                g(f"global_atomic_umax v5, v{33+i}, s[16:17] offset:{4*(1+i+(5 if helper else 0))}")
            if not helper:
                g(f"s_sub_u32 s{sT0}, s{sSt+6}, s{sSt}")
                g(f"v_mov_b32 v40, s{sT0}")
                g("global_atomic_add v5, v40, s[16:17] offset:44")
                g(f"s_sub_u32 s{sT0}, s{sSt+2}, s{sSt}")
                g(f"v_mov_b32 v41, s{sT0}")
                g("global_atomic_add v5, v41, s[16:17] offset:48")
            return
        g("s_mov_b64 exec, 1")
        g("s_waitcnt lgkmcnt(0)")
        g(f"s_mul_i32 s{sT0}, s2, 5")
        g(f"s_add_u32 s{sT0}, s{sT0}, s{sW}")
        g(f"s_lshl_b32 s{sT0}, s{sT0}, 6")
        g(f"s_add_u32 s{sT0}, s{sT0}, {hex(STAMP_BASE)}")
        g("v_mov_b32 v5, 0")
        for i in range(n):
            g(f"v_mov_b32 v{32+i}, s{sSt+2*i}")
        g(f"s_getreg_b32 s{sT1}, hwreg(HW_REG_XCC_ID)")
        g(f"v_mov_b32 v{32+6}, s{sT1}")
        g(f"s_getreg_b32 s{sT1}, hwreg(HW_REG_HW_ID)")
        g(f"v_mov_b32 v{32+7}, s{sT1}")
        g(f"buffer_store_dwordx4 v[32:35], v5, s[{srdW}:{srdW+3}], s{sT0} offen")
        g(f"buffer_store_dwordx4 v[36:39], v5, s[{srdW}:{srdW+3}], s{sT0} offen offset:16")
    def ws_srd():
        g(f"s_mov_b32 s{srdW}, s18")
        g(f"s_mov_b32 s{srdW+1}, s19")
        g(f"s_mov_b32 s{srdW+2}, {hex(WS_BYTES)}")
        g(f"s_mov_b32 s{srdW+3}, 0x20000")
    def epoch_load():
        g(f"s_lshl_b32 s{sEp}, s{sH}, 7")
        g(f"s_add_u32 s{sEp}, s{sEp}, {hex(EP_BASE)}")
        g(f"s_add_u32 s{sEp}, s18, s{sEp}")
        g(f"s_addc_u32 s{sEp+1}, s19, 0")
        g(f"s_load_dwordx2 s[{sTag}:{sTag+1}], s[{sEp}:{sEp+1}], 0")
    def epoch_bump():
        g(f"s_add_u32 s{sTag}, s{sTag}, {hex(INC_LO)}")
        g(f"s_addc_u32 s{sTag+1}, s{sTag+1}, {hex(INC_HI)}")
    main = NAME + "_kernel"
    g.raw(HEADER.rstrip("\n"))
    g.raw(f"; @launch grid=(256,1,1) block=(320,1,1) lds={WLO+128}")
    g.raw('.amdgcn_target "amdgcn-amd-amdhsa--gfx950"')
    g.raw(".text")
    g.raw(f".globl {main}")
    g.raw(".p2align 8")
    g.raw(f".type {main},@function")
    g.lab(main)
    g("s_cmp_ge_u32 s2, 0x100")
    g("s_cbranch_scc1 L_end")
    g("s_load_dwordx16 s[4:19], s[0:1], 0")
    stamp(0)
    g("v_lshrrev_b32 v5, 6, v0")
    g(f"v_and_b32 v{vT2}, 63, v0")
    g(f"v_readfirstlane_b32 s{sW}, v5")
    g(f"s_bfe_u32 s{sH}, s2, 0x30003")
    g(f"s_and_b32 s{sJ}, s2, 7")
    g(f"s_lshr_b32 s{sT0}, s2, 6")
    g(f"s_lshl_b32 s{sT0}, s{sT0}, 3")
    g(f"s_or_b32 s{sJ}, s{sJ}, s{sT0}")
    g(f"s_cmp_eq_u32 s{sW}, 4")
    g("s_cbranch_scc1 L_helper")
    g(f"s_lshl_b32 s{sU}, s{sW}, 5")
    g(f"s_add_u32 s{sU}, s{sU}, s{sJ}")
    g(f"s_lshl_b32 s{sT0}, s{sU}, 2")
    g(f"s_lshl_b32 s{sT1}, s{sH}, 8")
    g(f"s_lshl_b32 s{sT2}, s{sH}, 10")
    g(f"v_and_b32 v{vD}, {MAXB-1}, v{vT2}")
    g(f"v_lshlrev_b32 v{vD}, {LST+2}, v{vD}")
    g(f"v_add_u32 v{vD}, s{sT0}, v{vD}")
    g(f"v_lshrrev_b32 v5, 4, v{vT2}")
    g(f"v_and_b32 v{vD+1}, 3, v{vT2}")
    g(f"v_lshlrev_b32 v{vD+2}, 4, v{vD+1}")
    g(f"v_lshl_add_u32 v{vD+2}, v5, 6, v{vD+2}")
    g(f"v_bfe_u32 v{vT0}, v{vT2}, 2, 2")
    g(f"v_lshl_add_u32 v{vT1}, v{vT0}, 8, v{vD+2}")
    g(f"v_add_u32 v{vT1}, s{sT2}, v{vT1}")
    g("s_waitcnt lgkmcnt(0)")
    g(f"global_load_dword v{vBT}, v{vD}, s[10:11]")
    g(f"s_load_dword s{sCL}, s[12:13], 0")
    g(f"global_load_dwordx4 v[{vQ}:{vQ+3}], v{vT1}, s[4:5]")
    g(f"v_lshl_add_u32 v{vK0}, v{vT0}, 13, v{vD+2}")
    g(f"v_and_b32 v{vD+3}, 15, v{vT2}")
    g(f"v_lshlrev_b32 v{vD+3}, 4, v{vD+3}")
    g(f"v_lshl_add_u32 v{vV0}, v5, 13, v{vD+3}")
    g(f"v_add_u32 v{vK1}, 0x1000, v{vK0}")
    g(f"v_add_u32 v{vV1}, 0x1000, v{vV0}")
    g(f"s_add_u32 s{srdK}, s6, s{sT1}")
    g(f"s_addc_u32 s{srdK+1}, s7, 0")
    g(f"s_sub_u32 s{srdK+2}, {hex(KV_BYTES)}, s{sT1}")
    g(f"s_mov_b32 s{srdK+3}, 0x20000")
    g(f"s_add_u32 s{srdV}, s8, s{sT1}")
    g(f"s_addc_u32 s{srdV+1}, s9, 0")
    g(f"s_mov_b32 s{srdV+2}, s{srdK+2}")
    g(f"s_mov_b32 s{srdV+3}, 0x20000")
    ws_srd()
    g(f"s_lshl_b32 s{sPubML}, s{sH}, 5")
    g(f"s_add_u32 s{sPubML}, s{sPubML}, s{sJ}")
    g(f"s_lshl_b32 s{sPub}, s{sPubML}, 12")
    g(f"s_lshl_b32 s{sT0}, s{sW}, 8")
    g(f"s_add_u32 s{sPub}, s{sPub}, s{sT0}")
    g(f"s_lshl_b32 s{sPubML}, s{sPubML}, 7")
    g(f"s_add_u32 s{sPubML}, s{sPubML}, {hex(ML_BASE)}")
    g(f"v_lshlrev_b32 v{vL16}, 4, v{vT2}")
    g(f"v_lshlrev_b32 v{vG4}, 2, v5")
    g(f"v_mov_b32 v{vSc}, {f32(128 ** -0.5 * math.log2(math.e))}")
    g(f"v_mov_b32 v{vNEG}, 0xff800000")
    g(f"v_mov_b32 v{vM}, {f32(-1e30)}")
    g(f"v_mov_b32 v{vL}, 0")
    for r in range(8):
        g(f"v_mov_b32 v{vA0+r}, 0")
    g(f"s_lshl_b32 s{sT0}, s{sW}, 3")
    g(f"v_lshl_add_u32 v{vMLa}, v{vT2}, 3, s{sT0}")
    g(f"v_mov_b32 v{vT0}, 0x0c0c0c0c")
    def sel(dst, u_even, pat_even, pat_odd):
        g(f"v_mov_b32 v{vD+4}, {pat_even}")
        g(f"v_mov_b32 v{vD+5}, {pat_odd}")
        g(f"v_cmp_eq_u32 vcc, {u_even}, v{vD+1}")
        g("s_nop 1")
        g(f"v_cndmask_b32 v{dst}, v{vT0}, v{vD+4}, vcc")
        g(f"v_cmp_eq_u32 vcc, {u_even+1}, v{vD+1}")
        g("s_nop 1")
        g(f"v_cndmask_b32 v{dst}, v{dst}, v{vD+5}, vcc")
    sel(vSelAlo, 0, "0x0c0c0100", "0x01000c0c")
    sel(vSelBlo, 2, "0x0c0c0100", "0x01000c0c")
    sel(vSelAhi, 0, "0x0c0c0302", "0x03020c0c")
    sel(vSelBhi, 2, "0x0c0c0302", "0x03020c0c")
    g(f"v_mov_b32 v{vD+4}, 0x80000000")
    g(f"s_mov_b32 s{sK}, 0")
    g(f"s_lshl_b32 s{sT2}, s{sH}, 2")
    g(f"s_add_u32 s{sT2}, s{sT2}, s{sW}")
    g("s_waitcnt lgkmcnt(0)")
    epoch_load()
    g(f"s_max_i32 s{sCL}, s{sCL}, 0")
    g(f"s_min_i32 s{sCL}, s{sCL}, 0x10000")
    g(f"s_add_u32 s{sN}, s{sCL}, 15")
    g(f"s_lshr_b32 s{sN}, s{sN}, 4")
    g(f"s_add_u32 s{sN}, s{sN}, {STRIDE_B-1}")
    g(f"s_sub_u32 s{sN}, s{sN}, s{sU}")
    g(f"s_lshr_b32 s{sN}, s{sN}, {LST}")
    g(f"s_lshl_b32 s{sT0}, s{sU}, 4")
    g(f"s_sub_i32 s{sRem}, s{sCL}, s{sT0}")
    g(f"v_cmp_gt_u32 vcc, s{sN}, v{vT2}")
    g(f"s_cmp_eq_u32 s{sN}, 0")
    g("s_cbranch_scc1 L_epi")
    if WA != WB:
        g(f"s_bitcmp1_b32 {hex(bmask)}, s{sT2}")
    g("s_waitcnt vmcnt(1)")
    stamp(1)
    g(f"v_lshlrev_b32 v{vBT}, 15, v{vBT}")
    g(f"v_cndmask_b32 v{vBT}, v{vD+4}, v{vBT}, vcc")
    g("s_nop 0")
    g(f"v_readlane_b32 s{sB0}, v{vBT}, 0")
    g(f"v_readlane_b32 s{sB1}, v{vBT}, 1")
    g("s_nop 3")

    def load(pos, nxt):
        isK = pos < 8
        m = pos & 7
        srd = srdK if isK else srdV
        o0, o1 = (vK0, vK1) if isK else (vV0, vV1)
        base = vKB if isK else vVB
        b0, b1 = (sB0, sB1) if nxt else (sC0, sC1)
        so = b0 if m < 4 else b1
        vo = o0 if (m & 2) == 0 else o1
        off = " offset:2048" if (m & 1) else ""
        g(f"buffer_load_dwordx4 v[{base+4*m}:{base+4*m+3}], v{vo}, s[{srd}:{srd+3}], s{so} offen{off}{pol}")

    D = lambda m, r=0: vD + 4 * m + r
    def loop(W, sfx):
        def after(p):
            load((p + W) % 16, (p + W) // 16)
        KB, VB = vKB, vVB
        g.lab(f"L_loop{sfx}")
        g(f"s_mov_b64 s[{sC0}:{sC1}], s[{sB0}:{sB1}]")
        g(f"s_add_u32 s{sT0}, s{sK}, 2")
        g(f"s_add_u32 s{sT1}, s{sK}, 3")
        g(f"v_readlane_b32 s{sB0}, v{vBT}, s{sT0}")
        g(f"v_readlane_b32 s{sB1}, v{vBT}, s{sT1}")
        if W == 16:
            g("s_nop 2")
        for m in range(8):
            g(f"s_waitcnt vmcnt({W-1})")
            g(f"v_mfma_f32_16x16x32_bf16 v[{D(m)}:{D(m,3)}], v[{KB+4*m}:{KB+4*m+3}], v[{vQ}:{vQ+3}], 0")
            after(m)
        for r in range(4):
            for m in range(8):
                op = "v_mul_f32_dpp" if r == 0 else "v_fmac_f32_dpp"
                g(f"{op} v{D(m)}, v{D(m,r)}, v{vSc} quad_perm:[{r},{r},{r},{r}] row_mask:0xf bank_mask:0xf")
        g(f"s_cmp_ge_i32 s{sRem}, {16*STRIDE_B+16}")
        g(f"s_cbranch_scc1 L_nomask{sfx}")
        for m in range(8):
            cm = 16 * STRIDE_B * (m >> 2) + (m & 3)
            g(f"s_sub_i32 s{sT0}, s{sRem}, {cm}")
            g(f"v_cmp_gt_i32 vcc, s{sT0}, v{vG4}")
            g("s_nop 1")
            g(f"v_cndmask_b32 v{D(m)}, v{vNEG}, v{D(m)}, vcc")
        g.lab(f"L_nomask{sfx}")
        g(f"v_max3_f32 v{vT0}, v{D(0)}, v{D(1)}, v{D(2)}")
        g(f"v_max3_f32 v{vT1}, v{D(3)}, v{D(4)}, v{D(5)}")
        g(f"v_max3_f32 v{vT0}, v{vT0}, v{D(6)}, v{D(7)}")
        g(f"v_max3_f32 v{vT0}, v{vT0}, v{vT1}, v{vM}")
        g(f"v_mov_b32 v{vT1}, v{vT0}")
        g("s_nop 1")
        g(f"v_permlane16_swap_b32 v{vT0}, v{vT1}")
        g(f"v_max_f32 v{vT0}, v{vT0}, v{vT1}")
        g(f"v_mov_b32 v{vT1}, v{vT0}")
        g("s_nop 1")
        g(f"v_permlane32_swap_b32 v{vT0}, v{vT1}")
        g(f"v_max_f32 v{vT0}, v{vT0}, v{vT1}")
        g(f"v_sub_f32 v{vT1}, v{vM}, v{vT0}")
        g(f"v_exp_f32 v{vT1}, v{vT1}")
        g(f"v_mov_b32 v{vM}, v{vT0}")
        for m in range(8):
            g(f"v_sub_f32 v{D(m)}, v{D(m)}, v{vT0}")
        for m in range(8):
            g(f"v_exp_f32 v{D(m)}, v{D(m)}")
            if m % 2 == 1:
                q = m // 2
                g(f"v_mov_b32_dpp v{vT2}, v{vT1} row_newbcast:{4*q} row_mask:{hex(1<<q)} bank_mask:0xf")
        g(f"v_fma_f32 v{vL}, v{vL}, v{vT1}, v{D(0)}")
        for m in range(1, 8):
            g(f"v_add_f32 v{vL}, v{vL}, v{D(m)}")
        for m in range(0, 8, 2):
            g(f"v_cvt_pk_bf16_f32 v{D(m,1)}, v{D(m)}, v{D(m+1)}")
        for r in range(8):
            g(f"v_mul_f32 v{vA0+r}, v{vA0+r}, v{vT2}")
        for m in range(0, 8, 2):
            g(f"v_perm_b32 v{D(m,2)}, v{D(m,1)}, v{D(m,1)}, v{vSelAlo}")
            g(f"v_perm_b32 v{D(m,3)}, v{D(m,1)}, v{D(m,1)}, v{vSelBlo}")
            g(f"v_perm_b32 v{D(m+1,2)}, v{D(m,1)}, v{D(m,1)}, v{vSelAhi}")
            g(f"v_perm_b32 v{D(m+1,3)}, v{D(m,1)}, v{D(m,1)}, v{vSelBhi}")
        g(f"s_add_u32 s{sK}, s{sK}, 2")
        g(f"s_sub_i32 s{sRem}, s{sRem}, {hex(32*STRIDE_B)}")
        for m in range(8):
            g(f"s_waitcnt vmcnt({W-1})")
            g(f"v_mfma_f32_16x16x16_bf16 v[{vA0}:{vA0+3}], v[{D(m,2)}:{D(m,3)}], v[{VB+4*m}:{VB+4*m+1}], v[{vA0}:{vA0+3}]")
            g(f"v_mfma_f32_16x16x16_bf16 v[{vA1}:{vA1+3}], v[{D(m,2)}:{D(m,3)}], v[{VB+4*m+2}:{VB+4*m+3}], v[{vA1}:{vA1+3}]")
            after(8 + m)
        g(f"s_cmp_lt_u32 s{sK}, s{sN}")
        g(f"s_cbranch_scc1 L_loop{sfx}")

    lo, hi = min(WA, WB), max(WA, WB)
    assert WA <= WB
    for p in range(lo):
        load(p, 1)
    if WA != WB:
        g("s_cbranch_scc0 L_loopA")
        for p in range(lo, hi):
            load(p, 1)
        loop(WB, "B")
        g("s_branch L_epi")
    loop(WA, "A")

    g.lab("L_epi")
    g("s_waitcnt lgkmcnt(0)")
    epoch_bump()
    stamp(3)
    g(f"v_mov_b32 v{vT1}, v{vL}")
    g(f"s_lshl_b32 s{sT0}, s{sW}, 11")
    g(f"v_add_u32 v{vT0}, s{sT0}, v{vL16}")
    g(f"v_permlane16_swap_b32 v{vL}, v{vT1}")
    g(f"v_add_f32 v{vL}, v{vL}, v{vT1}")
    g(f"v_mov_b32 v{vT1}, v{vL}")
    g(f"ds_write_b128 v{vT0}, v[{vA0}:{vA0+3}]")
    g(f"ds_write_b128 v{vT0}, v[{vA1}:{vA1+3}] offset:1024")
    g(f"v_permlane32_swap_b32 v{vL}, v{vT1}")
    g(f"v_add_f32 v{vL}, v{vL}, v{vT1}")
    g("s_mov_b64 exec, 0x1111")
    g(f"ds_write_b64 v{vMLa}, v[{vM}:{vL}] offset:{MLO}")
    g("s_mov_b64 exec, -1")
    g(f"v_and_b32 v{vD}, 63, v0")
    g(f"v_lshrrev_b32 v{vD+1}, 4, v{vD}")
    g(f"v_lshlrev_b32 v{vD+2}, 5, v{vD+1}")
    g(f"v_bfe_u32 v{vD+3}, v{vD}, 2, 2")
    g(f"v_lshlrev_b32 v{vD+3}, 4, v{vD+3}")
    g(f"v_lshl_add_u32 v{vD+3}, v{vD+1}, 8, v{vD+3}")
    g(f"v_bfe_u32 v{vD+4}, v{vD}, 1, 1")
    g(f"v_lshl_add_u32 v{vD+3}, v{vD+4}, 10, v{vD+3}")
    g(f"v_and_b32 v{vD+4}, 1, v{vD}")
    g(f"v_lshl_add_u32 v{vD+3}, v{vD+4}, 3, v{vD+3}")
    g(f"s_lshl_b32 s{sT0}, s{sW}, 6")
    g(f"v_add_u32 v{vD+3}, s{sT0}, v{vD+3}")
    g(f"v_and_b32 v{vD+4}, 15, v{vD}")
    g(f"v_lshlrev_b32 v{vD+4}, 4, v{vD+4}")
    g(f"v_lshl_add_u32 v{vD+4}, v{vD+1}, 10, v{vD+4}")
    g(f"v_mov_b32 v{vA0+2}, s{sTag}")
    g(f"v_mov_b32 v{vA0+3}, s{sTag+1}")
    g(f"v_mov_b32 v{vA1+2}, s{sTag}")
    g(f"v_mov_b32 v{vA1+3}, s{sTag+1}")
    g(f"v_lshrrev_b32 v{vD+5}, 3, v{vD}")
    g(f"v_lshlrev_b32 v{vD+5}, 4, v{vD+5}")
    g("s_waitcnt lgkmcnt(0)")
    g("s_barrier")
    R = vD + 8
    g(f"ds_read_b128 v[{R}:{R+3}], v{vD+2} offset:{MLO}")
    g(f"ds_read_b128 v[{R+4}:{R+7}], v{vD+2} offset:{MLO+16}")
    for w in range(4):
        g(f"ds_read_b64 v[{R+8+2*w}:{R+9+2*w}], v{vD+3} offset:{2048*w}")
    g("s_waitcnt lgkmcnt(4)")
    mreg = lambda w: R + 2 * w
    lreg = lambda w: R + 2 * w + 1
    g(f"v_max3_f32 v{vT0}, v{mreg(0)}, v{mreg(1)}, v{mreg(2)}")
    g(f"v_max_f32 v{vA1}, v{vT0}, v{mreg(3)}")
    for w in range(4):
        g(f"v_sub_f32 v{mreg(w)}, v{mreg(w)}, v{vA1}")
    for w in range(4):
        g(f"v_exp_f32 v{mreg(w)}, v{mreg(w)}")
    g("s_waitcnt lgkmcnt(0)")
    g(f"v_mul_f32 v{vA0}, v{mreg(0)}, v{R+8}")
    g(f"v_mul_f32 v{vA0+1}, v{mreg(0)}, v{R+9}")
    for w in range(1, 4):
        g(f"v_fmac_f32 v{vA0}, v{mreg(w)}, v{R+8+2*w}")
        g(f"v_fmac_f32 v{vA0+1}, v{mreg(w)}, v{R+9+2*w}")
    if "nopub" not in diag:
        g(f"buffer_store_dwordx4 v[{vA0}:{vA0+3}], v{vD+4}, s[{srdW}:{srdW+3}], s{sPub} offen {sp}")
    g(f"s_cmp_eq_u32 s{sW}, 0")
    g("s_cbranch_scc0 L_pdone")
    g(f"v_mul_f32 v{vA1+1}, v{mreg(0)}, v{lreg(0)}")
    for w in range(1, 4):
        g(f"v_fmac_f32 v{vA1+1}, v{mreg(w)}, v{lreg(w)}")
    g("s_mov_b32 exec_lo, 0x01010101")
    g("s_mov_b32 exec_hi, 0x01010101")
    if "nopub" not in diag:
        g(f"buffer_store_dwordx4 v[{vA1}:{vA1+3}], v{vD+5}, s[{srdW}:{srdW+3}], s{sPubML} offen {sp}")
    g.lab("L_pdone")
    if stamps:
        stamp(2)
        g("s_waitcnt vmcnt(0)")
        stamp(4)
        dump_stamps(5)
    g.lab("L_end")
    g("s_endpgm")

    vLane = vT2
    hO = 64
    hML = 32
    hW = 48
    hOffO, hOffML, hOffOut, hLw, hLr = 1, 2, 4, 6, 7
    srdO = srdK
    sMLr, sOut, sDry, sCnt = 39, 41, 62, 63
    sO = [46, 47, 60, 61]
    sPm = [24, 26, 28, 30, 32]
    g.raw(".p2align 6")
    g.lab("L_helper")
    g(f"v_lshrrev_b32 v12, 3, v{vLane}")
    g(f"v_and_b32 v13, 7, v{vLane}")
    g(f"v_lshlrev_b32 v14, 4, v13")
    g(f"v_lshl_add_u32 v{hOffO}, v12, 14, v14")
    g(f"v_and_b32 v14, 31, v{vLane}")
    g(f"v_lshlrev_b32 v{hOffML}, 7, v14")
    g(f"v_lshlrev_b32 v{hLw}, 2, v14")
    g(f"v_lshlrev_b32 v{hLr}, 4, v12")
    g(f"v_lshlrev_b32 v{hOffOut}, 2, v13")
    g("s_waitcnt lgkmcnt(0)")
    epoch_load()
    ws_srd()
    g(f"s_mov_b32 s{srdO}, s14")
    g(f"s_mov_b32 s{srdO+1}, s15")
    g(f"s_mov_b32 s{srdO+2}, 0x2000")
    g(f"s_mov_b32 s{srdO+3}, 0x20000")
    g(f"s_lshl_b32 s{sT1}, s{sH}, 17")
    g(f"s_lshl_b32 s{sT2}, s{sJ}, 7")
    g(f"s_add_u32 s{sO[0]}, s{sT1}, s{sT2}")
    for i in range(1, 4):
        g(f"s_add_u32 s{sO[i]}, s{sO[0]}, {hex(4096*i)}")
    g(f"s_lshr_b32 s{sT0}, s{sJ}, 3")
    g(f"s_lshl_b32 s{sT0}, s{sT0}, 5")
    g(f"s_lshl_b32 s{sMLr}, s{sH}, 12")
    g(f"s_add_u32 s{sMLr}, s{sMLr}, s{sT0}")
    g(f"s_add_u32 s{sMLr}, s{sMLr}, {hex(ML_BASE)}")
    g(f"s_lshl_b32 s{sOut}, s{sH}, 10")
    g(f"s_lshl_b32 s{sT0}, s{sJ}, 5")
    g(f"s_add_u32 s{sOut}, s{sOut}, s{sT0}")
    g("s_waitcnt lgkmcnt(0)")
    epoch_bump()
    stamp(1)
    if "nohelp" in diag:
        g("s_barrier")
        for i in range(2, 5):
            stamp(i)
        dump_stamps(5)
        g("s_endpgm")
    if dry:
        g(f"s_mov_b32 s{sDry}, 1")
        g(f"s_mov_b32 s{sCnt}, 0x200000")
        g(f"s_mov_b32 s{srdW+2}, 0")
        g("s_branch L_go")
    g.lab("L_real")
    g(f"s_mov_b32 s{srdW+2}, {hex(WS_BYTES)}")
    g(f"s_mov_b32 s{sDry}, 0")
    g(f"s_mov_b32 s{sCnt}, 0")
    g("s_barrier")
    stamp(2)
    if d0:
        g(f"s_sleep {d0}")
    g.lab("L_go")
    for i in range(4):
        g(f"s_mov_b64 s[{sPm[i]}:{sPm[i]+1}], -1")
    g(f"s_mov_b32 s{sPm[4]}, -1")
    g(f"s_mov_b32 s{sPm[4]+1}, 0")
    g.lab("L_poll")
    g(f"s_mov_b64 exec, s[{sPm[4]}:{sPm[4]+1}]")
    g("s_cbranch_execz L_sk4")
    g(f"buffer_load_dwordx4 v[{hML}:{hML+3}], v{hOffML}, s[{srdW}:{srdW+3}], s{sMLr} offen {lp}")
    g.lab("L_sk4")
    for i in range(4):
        g(f"s_mov_b64 exec, s[{sPm[i]}:{sPm[i]+1}]")
        g(f"s_cbranch_execz L_sk{i}")
        g(f"buffer_load_dwordx4 v[{hO+4*i}:{hO+4*i+3}], v{hOffO}, s[{srdW}:{srdW+3}], s{sO[i]} offen {lp}")
        g.lab(f"L_sk{i}")
    g("s_mov_b32 exec_lo, -1")
    g("s_mov_b32 exec_hi, 0")
    g(f"s_add_u32 s{sCnt}, s{sCnt}, 1")
    g("s_waitcnt vmcnt(0)")
    g(f"v_cmp_ne_u64 s[{sPm[4]}:{sPm[4]+1}], s[{sTag}:{sTag+1}], v[{hML+2}:{hML+3}]")
    g("s_mov_b64 exec, -1")
    for i in range(4):
        g(f"v_cmp_ne_u64 s[{sPm[i]}:{sPm[i]+1}], s[{sTag}:{sTag+1}], v[{hO+4*i+2}:{hO+4*i+3}]")
    g(f"s_cmp_ge_u32 s{sCnt}, 0x200000")
    g("s_cbranch_scc1 L_got")
    g(f"s_or_b64 s[34:35], s[{sPm[0]}:{sPm[0]+1}], s[{sPm[1]}:{sPm[1]+1}]")
    g(f"s_or_b64 s[34:35], s[34:35], s[{sPm[2]}:{sPm[2]+1}]")
    g(f"s_or_b64 s[34:35], s[34:35], s[{sPm[3]}:{sPm[3]+1}]")
    g(f"s_or_b64 s[34:35], s[34:35], s[{sPm[4]}:{sPm[4]+1}]")
    g("s_cbranch_scc0 L_got")
    if slp:
        g(f"s_sleep {slp}")
    g("s_branch L_poll")
    g.lab("L_got")
    stamp(3)
    def allreduce32(op, r, t):
        for sh in (1, 2, 4, 8):
            g(f"{op}_dpp v{r}, v{r}, v{r} row_ror:{sh} row_mask:0xf bank_mask:0xf")
            if sh != 8:
                g("s_nop 1")
        g(f"v_mov_b32 v{t}, v{r}")
        g("s_nop 1")
        g(f"v_permlane16_swap_b32 v{r}, v{t}")
        g(f"{op} v{r}, v{r}, v{t}")
    g(f"v_mov_b32 v12, v{hML}")
    g("s_nop 1")
    allreduce32("v_max_f32", 12, 13)
    g(f"v_sub_f32 v15, v{hML}, v12")
    g(f"v_exp_f32 v15, v15")
    g("s_mov_b32 exec_hi, 0")
    g(f"v_mul_f32 v14, v15, v{hML+1}")
    g(f"ds_write_b32 v{hLw}, v15 offset:{WLO}")
    g("s_mov_b32 exec_hi, -1")
    g(f"ds_read_b128 v[{hW}:{hW+3}], v{hLr} offset:{WLO}")
    allreduce32("v_add_f32", 14, 13)
    g("v_rcp_f32 v14, v14")
    g("s_waitcnt lgkmcnt(0)")
    g(f"v_mul_f32 v16, v{hW}, v{hO}")
    g(f"v_mul_f32 v17, v{hW}, v{hO+1}")
    for i in range(1, 4):
        g(f"v_fmac_f32 v16, v{hW+i}, v{hO+4*i}")
        g(f"v_fmac_f32 v17, v{hW+i}, v{hO+4*i+1}")
    g("s_nop 1")
    g("v_permlane32_swap_b32 v16, v17")
    g("v_add_f32 v16, v16, v17")
    g("v_mov_b32 v17, v16")
    g("s_nop 1")
    g("v_permlane16_swap_b32 v16, v17")
    g("v_add_f32 v16, v16, v17")
    g("s_nop 1")
    g("v_add_f32_dpp v16, v16, v16 row_ror:8 row_mask:0xf bank_mask:0xf")
    g("v_mov_b32 v17, v16")
    g("s_nop 1")
    g("v_permlane32_swap_b32 v16, v17")
    g("v_mul_f32 v16, v16, v14")
    g("v_mul_f32 v17, v17, v14")
    g("v_cvt_pk_bf16_f32 v16, v16, v17")
    if dry:
        g(f"s_cmp_eq_u32 s{sDry}, 1")
        g("s_cbranch_scc1 L_real")
    g("s_mov_b64 exec, 0xff")
    g(f"buffer_store_dword v16, v{hOffOut}, s[{srdO}:{srdO+3}], s{sOut} offen")
    g(f"s_cmp_eq_u32 s{sJ}, 0")
    g("s_cbranch_scc0 L_hdone")
    g("s_mov_b64 exec, 1")
    g(f"v_mov_b32 v12, s{sTag}")
    g(f"v_mov_b32 v13, s{sTag+1}")
    g("v_mov_b32 v14, 0")
    g(f"global_store_dwordx2 v14, v[12:13], s[{sEp}:{sEp+1}]")
    g.lab("L_hdone")
    if stamps:
        stamp(4)
        g(f"s_mov_b32 s{sSt+10}, s{sCnt}")
        dump_stamps(6, True)
    g("s_endpgm")
    g.raw('.section .rodata,"a"')
    g.raw(".p2align 6")
    g.raw(kd(main, NV, 96))
    return g.text()

if __name__ == "__main__":
    import argparse
    ap = argparse.ArgumentParser()
    ap.add_argument("-o", default=f"cdna_kernels/{NAME}.s")
    ap.add_argument("--wa", type=int, default=6)
    ap.add_argument("--wb", type=int, default=6)
    ap.add_argument("--bmask", default="0x00f000f0")
    ap.add_argument("--pol", default="nt")
    ap.add_argument("--stamps", action="store_true")
    ap.add_argument("--nodry", action="store_true")
    ap.add_argument("--slp", type=int, default=2)
    ap.add_argument("--diag", default="")
    ap.add_argument("--d0", type=int, default=0)
    ap.add_argument("--dbg", action="store_true")
    ap.add_argument("--lp", default="sc1")
    ap.add_argument("--sp", default="sc1")
    a = ap.parse_args()
    open(a.o, "w").write(gen(WA=a.wa, WB=a.wb, bmask=int(a.bmask, 16), pol=a.pol, stamps=a.stamps, dry=not a.nodry, slp=a.slp, diag=a.diag, d0=a.d0, dbg=a.dbg, lp=a.lp, sp=a.sp))
```

```python
import sys, struct, math

NAME = "standalone__paged_block_table_kv_pagedattention__decode"
KV_BYTES = 4100 * 32768
WS_BYTES = 537395200
ML_BASE = 1 << 20
EP_BASE = ML_BASE + 0x8000
STAMP_BASE = 2 << 20
INC_LO, INC_HI = 0x7F4A7C15, 0x9E3779B9
SPIN = 0x200000
LOG2E = math.log2(math.e)
SM2 = -998244352.0 * LOG2E

def f32(x):
    return "0x%08x" % struct.unpack("<I", struct.pack("<f", x))[0]

HEADER = """; Kernarg layout for this problem (64 bytes, ptrs only, base s[0:1]):
"""

class G:
    def __init__(s):
        s.L = []
    def __call__(s, t):
        s.L.append("    " + t)
    def lab(s, t):
        s.L.append(t + ":")
    def raw(s, t):
        s.L.append(t)
    def text(s):
        return "\n".join(s.L) + "\n"

def kd(name, vgpr, sgpr):
    acc = (vgpr + 3) // 4 * 4
    return f""".amdhsa_kernel {name}
  .amdhsa_next_free_vgpr {vgpr}
  .amdhsa_next_free_sgpr {sgpr}
  .amdhsa_accum_offset {acc}
  .amdhsa_group_segment_fixed_size 0
  .amdhsa_kernarg_size 64
  .amdhsa_user_sgpr_count 2
  .amdhsa_user_sgpr_kernarg_segment_ptr 1
  .amdhsa_system_sgpr_workgroup_id_x 1
.end_amdhsa_kernel
"""

def schedule(dist):
    issue = {p: [] for p in range(4)}
    for i in range(40, 44):
        c = i - dist[i % 4]
        issue[c % 4].append((i // 4 - c // 4, i % 4))
    t = [i - dist[i % 4] for i in range(80)]
    assert all(t[i] <= t[i + 1] for i in range(79)), "issue order must be monotone"
    for p in issue:
        issue[p].sort()
    wait = {}
    for p in range(4):
        c = 40 + p
        last = max(i for i in range(80) if t[i] < c)
        wait[p] = last - c
    npro = sum(1 for i in range(80) if t[i] < 0)
    assert all(1 <= du <= 2 for p in issue for du, _ in issue[p]) and max(dist) <= 8
    return issue, wait, npro

def gen(DA=(6,6,6,6), DB=(8,8,8,8), bmask=0x22, stamps=False, dry=True, d0=8, diag="", mls=64, op=""):
    g = G()
    pol = " nt"
    LST = 7
    STRIDE_B = 128
    MAXB = 32
    MLO = 32768
    FLO = MLO + 128
    vK0, vK1, vV0, vV1 = 1, 2, 3, 4
    vMLw, vBT, vMLr = 5, 6, 7
    vQ = 8
    vA0, vA1 = 12, 16
    vM, vL, vSc, vTok = 20, 21, 22, 23
    vMsk0, vMsk1, vS, vSn = 24, 25, 26, 27
    vT0, vT1, vT2, vNEG = 28, 29, 30, 31
    vD = 32
    vI = {(1, 0): 48, (1, 1): 49, (2, 0): 50, (2, 1): 51}
    vP = 52
    vAw, vOr, vPo, vSa, vFr = 56, 57, 58, 59, 60
    vR = 64
    vX = 96
    NV = 104
    sW, sH, sJ, sU = 3, 36, 37, 38
    sS, sN, sRem, sT0, sT1, sT2 = 39, 40, 41, 42, 43, 44
    sCL = 45
    sOf = {1: 46, 2: 47}
    srdI = {1: 48, 2: 52}
    srdW = 56
    sPub = 62
    sKb, sVb = 26, 28
    sMk = {1: 30, 2: 32}
    sQm = [34, 60, 84]
    sE, sEp, sTag = 20, 22, 24
    sSt = 64
    def stamp(i):
        if stamps:
            g(f"s_memrealtime s[{sSt + 2*i}:{sSt + 2*i + 1}]")
    def dump_stamps(n):
        if not stamps:
            return
        g("s_mov_b64 exec, 1")
        g("s_waitcnt lgkmcnt(0)")
        g(f"s_mul_i32 s{sT0}, s2, 5")
        g(f"s_add_u32 s{sT0}, s{sT0}, s{sW}")
        g(f"s_lshl_b32 s{sT0}, s{sT0}, 6")
        g(f"s_add_u32 s{sT0}, s{sT0}, {hex(STAMP_BASE)}")
        g("v_mov_b32 v5, 0")
        for i in range(n):
            g(f"v_mov_b32 v{32+i}, s{sSt+2*i}")
        g(f"s_getreg_b32 s{sT1}, hwreg(HW_REG_XCC_ID)")
        g(f"v_mov_b32 v{32+6}, s{sT1}")
        g(f"s_getreg_b32 s{sT1}, hwreg(HW_REG_HW_ID)")
        g(f"v_mov_b32 v{32+7}, s{sT1}")
        g(f"buffer_store_dwordx4 v[32:35], v5, s[{srdW}:{srdW+3}], s{sT0} offen")
        g(f"buffer_store_dwordx4 v[36:39], v5, s[{srdW}:{srdW+3}], s{sT0} offen offset:16")
    def ws_srd():
        g(f"s_mov_b32 s{srdW}, s18")
        g(f"s_mov_b32 s{srdW+1}, s19")
        g(f"s_mov_b32 s{srdW+2}, {hex(WS_BYTES)}")
        g(f"s_mov_b32 s{srdW+3}, 0x20000")
    def epoch_load():
        g(f"s_lshl_b32 s{sEp}, s{sH}, 7")
        g(f"s_add_u32 s{sEp}, s{sEp}, {hex(EP_BASE)}")
        g(f"s_add_u32 s{sEp}, s18, s{sEp}")
        g(f"s_addc_u32 s{sEp+1}, s19, 0")
        g(f"s_load_dwordx2 s[{sE}:{sE+1}], s[{sEp}:{sEp+1}], 0")
    def make_tag():
        g(f"s_add_u32 s{sTag}, s{sE}, {hex(INC_LO)}")
        g(f"s_addc_u32 s{sTag+1}, s{sE+1}, {hex(INC_HI)}")
    def clamp_cl():
        g(f"s_max_i32 s{sCL}, s{sCL}, 0")
        g(f"s_min_i32 s{sCL}, s{sCL}, 0x10000")
    def ld(half, pos, vo, srd, so):
        r = vR + 16 * half + 4 * pos
        off = " offset:2048" if (pos & 1) else ""
        g(f"buffer_load_dwordx4 v[{r}:{r+3}], v{vo}, s[{srd}:{srd+3}], s{so} offen{off}{pol}")

    schA, schB = schedule(DA), schedule(DB)
    two = DA != DB
    assert schA[2] <= schB[2]
    main = NAME + "_kernel"
    g.raw(HEADER.rstrip("\n"))
    g.raw(f"; @launch grid=(256,1,1) block=(320,1,1) lds={FLO+128}")
    g.raw('.amdgcn_target "amdgcn-amd-amdhsa--gfx950"')
    g.raw(".text")
    g.raw(f".globl {main}")
    g.raw(".p2align 8")
    g.raw(f".type {main},@function")
    g.lab(main)
    g("s_load_dwordx16 s[4:19], s[0:1], 0")
    stamp(0)
    g(f"v_readfirstlane_b32 s{sW}, v0")
    g("s_cmp_ge_u32 s2, 0x100")
    g("s_cbranch_scc1 L_end")
    g(f"v_and_b32 v{vT2}, 63, v0")
    g(f"s_bfe_u32 s{sH}, s2, 0x30003")
    g(f"s_and_b32 s{sJ}, s2, 7")
    g(f"s_lshr_b32 s{sT0}, s2, 6")
    g(f"s_lshr_b32 s{sW}, s{sW}, 6")
    g(f"s_lshl3_add_u32 s{sJ}, s{sT0}, s{sJ}")
    g(f"s_lshl_b32 s{sT1}, s{sH}, 8")
    g(f"s_cmp_eq_u32 s{sW}, 4")
    g("s_cbranch_scc1 L_helper")
    g(f"s_lshl_b32 s{sU}, s{sW}, 5")
    g(f"s_add_u32 s{sU}, s{sU}, s{sJ}")
    g(f"s_lshl_b32 s{sT0}, s{sU}, 2")
    g(f"v_lshrrev_b32 v{vX}, 4, v{vT2}")
    g(f"v_and_b32 v{vX+1}, 3, v{vT2}")
    g(f"v_lshlrev_b32 v{vX+2}, 4, v{vX+1}")
    g(f"v_lshl_add_u32 v{vX+2}, v{vX}, 6, v{vX+2}")
    g(f"v_bfe_u32 v{vX+3}, v{vT2}, 2, 2")
    g(f"v_lshl_add_u32 v{vK0}, v{vX+3}, 13, v{vX+2}")
    g(f"v_add_u32 v{vK1}, 0x1000, v{vK0}")
    g(f"v_lshl_add_u32 v{vT1}, v{vX+3}, 8, v{vX+2}")
    g(f"v_and_b32 v{vT0}, {MAXB-1}, v{vT2}")
    g(f"v_lshlrev_b32 v{vT0}, {LST+2}, v{vT0}")
    g(f"s_sub_u32 s{srdI[2]+2}, {hex(KV_BYTES)}, s{sT1}")
    g(f"s_mov_b32 s{srdI[2]+3}, 0x20000")
    g("s_waitcnt lgkmcnt(0)")
    g(f"s_add_u32 s10, s10, s{sT0}")
    g("s_addc_u32 s11, s11, 0")
    g(f"s_load_dword s{sOf[1]}, s[10:11], 0")
    g(f"s_load_dword s{sOf[2]}, s[10:11], {STRIDE_B*4}")
    g(f"s_load_dword s{sCL}, s[12:13], 0")
    g(f"s_lshl2_add_u32 s4, s{sT1}, s4")
    g("s_addc_u32 s5, s5, 0")
    g(f"global_load_dword v{vBT}, v{vT0}, s[10:11]")
    g(f"global_load_dwordx4 v[{vQ}:{vQ+3}], v{vT1}, s[4:5]")
    g(f"s_add_u32 s{srdI[2]}, s6, s{sT1}")
    g(f"s_addc_u32 s{srdI[2]+1}, s7, 0")
    g("s_waitcnt lgkmcnt(0)")
    g(f"s_lshl_b32 s{sOf[1]}, s{sOf[1]}, 15")
    g(f"s_lshl_b32 s{sOf[2]}, s{sOf[2]}, 15")
    def pro(i):
        ld(i // 4, i % 4, vK0 if (i & 2) == 0 else vK1, srdI[2], sOf[1 + i // 4])
    for i in range(schA[2]):
        pro(i)
    stamp(1)
    if two and schB[2] > schA[2]:
        g(f"s_bitcmp1_b32 {hex(bmask)}, s{sH}")
        g("s_cbranch_scc0 L_noextra")
        for i in range(schA[2], schB[2]):
            pro(i)
        g.lab("L_noextra")
    epoch_load()
    g(f"s_mov_b64 s[{sKb}:{sKb+1}], s[{srdI[2]}:{srdI[2]+1}]")
    g(f"s_add_u32 s{sVb}, s8, s{sT1}")
    g(f"s_addc_u32 s{sVb+1}, s9, 0")
    g(f"s_mov_b32 s{srdI[1]+2}, s{srdI[2]+2}")
    g(f"s_mov_b32 s{srdI[1]+3}, 0x20000")
    g(f"s_mov_b64 s[{sMk[2]}:{sMk[2]+1}], 0")
    ws_srd()
    g(f"v_and_b32 v{vX+4}, 15, v{vT2}")
    g(f"v_lshlrev_b32 v{vX+4}, 4, v{vX+4}")
    g(f"v_lshl_add_u32 v{vV0}, v{vX}, 13, v{vX+4}")
    g(f"v_add_u32 v{vV1}, 0x1000, v{vV0}")
    g(f"v_lshl_add_u32 v{vPo}, v{vX}, 10, v{vX+4}")
    g(f"s_lshl_b32 s{sPub}, s{sH}, 5")
    g(f"s_add_u32 s{sPub}, s{sPub}, s{sJ}")
    g(f"s_lshl_b32 s{sPub}, s{sPub}, 4")
    g(f"s_add_u32 s{sPub}, s{sPub}, s{sW}")
    g(f"s_lshl_b32 s{sPub}, s{sPub}, 8")
    g(f"s_lshl_b32 s{sT0}, s{sW}, 13")
    g(f"v_lshl_add_u32 v{vAw}, v{vT2}, 4, s{sT0}")
    g(f"v_lshl_add_u32 v{vSa}, v{vT2}, 2, s{sT0}")
    g(f"v_lshlrev_b32 v{vOr}, 4, v{vX+3}")
    g(f"v_lshl_add_u32 v{vOr}, v{vX}, 8, v{vOr}")
    g(f"v_bfe_u32 v{vX+5}, v{vT2}, 1, 1")
    g(f"v_lshl_add_u32 v{vOr}, v{vX+5}, 10, v{vOr}")
    g(f"v_and_b32 v{vX+5}, 1, v{vT2}")
    g(f"v_lshl_add_u32 v{vOr}, v{vX+5}, 3, v{vOr}")
    g(f"s_lshl_b32 s{sT0}, s{sW}, 6")
    g(f"v_add_u32 v{vOr}, s{sT0}, v{vOr}")
    g(f"v_lshlrev_b32 v{vFr}, 2, v{vX}")
    g(f"v_lshlrev_b32 v{vMLr}, 5, v{vX+3}")
    g(f"s_lshl_b32 s{sT0}, s{sW}, 3")
    g(f"v_add_u32 v{vMLw}, s{sT0}, v{vMLr}")
    g(f"v_lshl_add_u32 v{vTok}, v{vX}, 2, v{vX+1}")
    g(f"v_mov_b32 v{vSc}, {f32(128 ** -0.5 * LOG2E)}")
    g(f"v_mov_b32 v{vNEG}, 0xff800000")
    g(f"v_mov_b32 v{vM}, {f32(-1e30)}")
    g(f"v_mov_b32 v{vL}, 0")
    for r in range(8):
        g(f"v_mov_b32 v{vA0+r}, 0")
    for x in range(3):
        m32 = hex(0x11111111 << (x + 1))
        g(f"s_mov_b32 s{sQm[x]}, {m32}")
        g(f"s_mov_b32 s{sQm[x]+1}, {m32}")
    g(f"v_lshlrev_b32 v{vX+5}, 4, v{vX+5}")
    g(f"v_mov_b32 v{vX+6}, 0xffff")
    g(f"v_lshlrev_b32 v{vX+6}, v{vX+5}, v{vX+6}")
    g(f"v_cmp_gt_u32 vcc, 2, v{vX+1}")
    g(f"v_bfrev_b32 v{vX+5}, 1")
    g(f"s_mov_b32 s{sS}, 0")
    g(f"v_cndmask_b32 v{vMsk0}, 0, v{vX+6}, vcc")
    g(f"v_xor_b32 v{vMsk1}, v{vMsk0}, v{vX+6}")
    clamp_cl()
    g(f"s_add_u32 s{sN}, s{sCL}, 15")
    g(f"s_lshr_b32 s{sN}, s{sN}, 4")
    g(f"s_add_u32 s{sN}, s{sN}, {STRIDE_B-1}")
    g(f"s_sub_u32 s{sN}, s{sN}, s{sU}")
    g(f"s_lshr_b32 s{sN}, s{sN}, {LST}")
    g(f"s_max_u32 s{sN}, s{sN}, 2")
    g(f"s_lshl_b32 s{sT0}, s{sU}, 4")
    g(f"s_sub_i32 s{sRem}, s{sCL}, s{sT0}")
    g(f"v_cmp_gt_u32 vcc, s{sN}, v{vT2}")
    g(f"s_waitcnt vmcnt({schA[2]+1})")
    g(f"v_lshlrev_b32 v{vBT}, 15, v{vBT}")
    g(f"v_cndmask_b32 v{vBT}, v{vX+5}, v{vBT}, vcc")
    if two:
        g(f"s_bitcmp1_b32 {hex(bmask)}, s{sH}")
        g("s_cbranch_scc1 L_k0B")

    D = lambda m, r=0: vD + 4 * m + r
    def phases(sch, sfx):
        issue, wait, _ = sch
        used = sorted({(du, pos >> 1) for p in issue for du, pos in issue[p]})
        dus = sorted({du for du, _ in used})
        for half in (0, 1):
            g.lab(f"L_k{half}{sfx}")
            g(f"s_add_u32 s{sT0}, s{sS}, 2")
            g(f"s_mov_b32 s{sOf[1]}, s{sOf[2]}")
            if 1 in dus:
                g(f"s_mov_b64 s[{srdI[1]}:{srdI[1]+1}], s[{srdI[2]}:{srdI[2]+1}]")
                g(f"s_mov_b64 s[{sMk[1]}:{sMk[1]+1}], s[{sMk[2]}:{sMk[2]+1}]")
            g(f"s_cmp_ge_u32 s{sT0}, s{sN}")
            g(f"s_cselect_b32 s{sT1}, s{sN}, 0")
            g(f"s_cselect_b64 s[{srdI[2]}:{srdI[2]+1}], s[{sVb}:{sVb+1}], s[{sKb}:{sKb+1}]")
            g(f"s_cselect_b64 s[{sMk[2]}:{sMk[2]+1}], -1, 0")
            g(f"s_sub_u32 s{sT0}, s{sT0}, s{sT1}")
            g(f"v_readlane_b32 s{sOf[2]}, v{vBT}, s{sT0}")
            for du, o in used:
                g(f"v_cndmask_b32 v{vI[(du, o)]}, v{vK0 + o}, v{vV0 + o}, s[{sMk[du]}:{sMk[du]+1}]")
            g(f"v_cmp_gt_i32 vcc, s{sRem}, v{vTok}")
            g(f"s_add_u32 s{sS}, s{sS}, 1")
            g(f"s_sub_i32 s{sRem}, s{sRem}, {hex(16*STRIDE_B)}")
            for p in range(4):
                r = vR + 16 * half + 4 * p
                g(f"s_waitcnt vmcnt({wait[p]})")
                g(f"v_mfma_f32_16x16x32_bf16 v[{D(p)}:{D(p,3)}], v[{r}:{r+3}], v[{vQ}:{vQ+3}], 0")
                for du, pos in issue[p]:
                    ld((half + du) & 1, pos, vI[(du, pos >> 1)], srdI[du], sOf[du])
            g(f"s_nop {4 - len(issue[3])}")
            for r in range(4):
                for m in range(4):
                    op = "v_mul_f32_dpp" if r == 0 else "v_fmac_f32_dpp"
                    g(f"{op} v{D(m)}, v{D(m,r)}, v{vSc} quad_perm:[{r},{r},{r},{r}] row_mask:0xf bank_mask:0xf")
            g(f"v_cndmask_b32 v{vS}, v{D(0)}, v{D(1)}, s[{sQm[0]}:{sQm[0]+1}]")
            g(f"v_cndmask_b32 v{vS}, v{vS}, v{D(2)}, s[{sQm[1]}:{sQm[1]+1}]")
            g(f"v_cndmask_b32 v{vS}, v{vS}, v{D(3)}, s[{sQm[2]}:{sQm[2]+1}]")
            g(f"v_cndmask_b32 v{vS}, v{vNEG}, v{vS}, vcc")
            g(f"ds_write_b32 v{vSa}, v{vS}")
            g(f"v_max_f32 v{vT0}, v{vM}, v{vS}")
            g(f"v_sub_f32 v{vT1}, v{vM}, v{vT0}")
            g(f"v_sub_f32 v{vT2}, v{vS}, v{vT0}")
            g(f"v_exp_f32 v{vT1}, v{vT1}")
            g(f"v_exp_f32 v{vT2}, v{vT2}")
            g(f"v_mov_b32 v{vM}, v{vT0}")
            g(f"v_add_u32 v{vSa}, 0x100, v{vSa}")
            g(f"v_fma_f32 v{vL}, v{vL}, v{vT1}, v{vT2}")
            g(f"s_cmp_lt_u32 s{sS}, s{sN}")
            if half == 0:
                g(f"s_cbranch_scc0 L_mid{sfx}")
            else:
                g(f"s_cbranch_scc1 L_k0{sfx}")
        g.lab(f"L_mid{sfx}")
        def allred(op, r, t):
            g(f"{op}_dpp v{r}, v{r}, v{r} quad_perm:[1,0,3,2] row_mask:0xf bank_mask:0xf")
            g("s_nop 1")
            g(f"{op}_dpp v{r}, v{r}, v{r} quad_perm:[2,3,0,1] row_mask:0xf bank_mask:0xf")
            g(f"v_mov_b32 v{t}, v{r}")
            g("s_nop 1")
            g(f"v_permlane16_swap_b32 v{r}, v{t}")
            g(f"{op} v{r}, v{r}, v{t}")
            g(f"v_mov_b32 v{t}, v{r}")
            g("s_nop 1")
            g(f"v_permlane32_swap_b32 v{r}, v{t}")
            g(f"{op} v{r}, v{r}, v{t}")
        stamp(5)
        g(f"s_lshl_b32 s{sT0}, s{sN}, 8")
        g(f"v_subrev_u32 v{vSa}, s{sT0}, v{vSa}")
        allred("v_max_f32", vM, vT1)
        g(f"v_sub_f32 v{vT0}, v{vT0}, v{vM}")
        g(f"v_exp_f32 v{vT0}, v{vT0}")
        g(f"ds_read_b32 v{vSn}, v{vSa}")
        g(f"v_mul_f32 v{vL}, v{vL}, v{vT0}")
        g("s_nop 1")
        allred("v_add_f32", vL, vT1)
        g("s_mov_b64 exec, 0x1111")
        g(f"ds_write_b64 v{vMLw}, v[{vM}:{vL}] offset:{MLO}")
        g("s_mov_b64 exec, -1")
        g("s_waitcnt lgkmcnt(0)")
        g("s_barrier")
        g(f"ds_read_b128 v[{vX}:{vX+3}], v{vMLr} offset:{MLO}")
        g(f"ds_read_b128 v[{vX+4}:{vX+7}], v{vMLr} offset:{MLO+16}")
        make_tag()
        g(f"v_mov_b32 v{vP+2}, s{sTag}")
        g(f"v_mov_b32 v{vP+3}, s{sTag+1}")
        g(f"s_mov_b32 s{sS}, 0")
        g("s_waitcnt lgkmcnt(0)")
        g(f"v_max3_f32 v{vM}, v{vX}, v{vX+2}, v{vX+4}")
        g(f"v_max_f32 v{vM}, v{vM}, v{vX+6}")
        g(f"s_bitcmp1_b32 s{sN}, 0")
        g(f"s_cbranch_scc1 L_v1{sfx}")
        for half in (0, 1):
            g.lab(f"L_v{half}{sfx}")
            g(f"s_add_u32 s{sT0}, s{sS}, 2")
            g(f"s_mov_b32 s{sOf[1]}, s{sOf[2]}")
            g(f"v_readlane_b32 s{sOf[2]}, v{vBT}, s{sT0}")
            g("s_waitcnt lgkmcnt(0)")
            g(f"v_sub_f32 v{vS}, v{vSn}, v{vM}")
            g(f"v_exp_f32 v{vS}, v{vS}")
            g(f"ds_read_b32 v{vSn}, v{vSa} offset:256")
            g(f"v_cvt_pk_bf16_f32 v{vS}, v{vS}, v{vS}")
            g(f"v_add_u32 v{vSa}, 0x100, v{vSa}")
            g(f"s_add_u32 s{sS}, s{sS}, 1")
            for m in range(4):
                g(f"v_and_b32_dpp v{D(m)}, v{vS}, v{vMsk0} quad_perm:[{m},{m},{m},{m}] row_mask:0xf bank_mask:0xf")
                g(f"v_and_b32_dpp v{D(m,1)}, v{vS}, v{vMsk1} quad_perm:[{m},{m},{m},{m}] row_mask:0xf bank_mask:0xf")
            g(f"s_cmp_lt_u32 s{sS}, s{sN}")
            for p in range(4):
                r = vR + 16 * half + 4 * p
                g(f"s_waitcnt vmcnt({wait[p]})")
                g(f"v_mfma_f32_16x16x16_bf16 v[{vA0}:{vA0+3}], v[{D(p)}:{D(p,1)}], v[{r}:{r+1}], v[{vA0}:{vA0+3}]")
                g(f"v_mfma_f32_16x16x16_bf16 v[{vA1}:{vA1+3}], v[{D(p)}:{D(p,1)}], v[{r+2}:{r+3}], v[{vA1}:{vA1+3}]")
                if p == 3:
                    g("s_cbranch_scc0 L_fin")
                for du, pos in issue[p]:
                    ld((half + du) & 1, pos, vV0 + (pos >> 1), srdI[2], sOf[du])
            if half == 1:
                g(f"s_branch L_v0{sfx}")

    if two:
        phases(schA, "A")
        phases(schB, "B")
    else:
        phases(schA, "A")

    g.lab("L_fin")
    g("s_nop 6")
    stamp(3)
    g(f"ds_write_b128 v{vAw}, v[{vA0}:{vA0+3}]")
    g(f"ds_write_b128 v{vAw}, v[{vA1}:{vA1+3}] offset:1024")
    g("s_waitcnt lgkmcnt(0)")
    g("s_barrier")
    for w in range(4):
        g(f"ds_read_b64 v[{vX+2*w}:{vX+2*w+1}], v{vOr} offset:{8192*w}")
    g(f"ds_read_b32 v{vT0}, v{vFr} offset:{FLO}")
    g("s_waitcnt lgkmcnt(3)")
    g(f"v_add_f32 v{vX}, v{vX}, v{vX+2}")
    g(f"v_add_f32 v{vX+1}, v{vX+1}, v{vX+3}")
    g("s_waitcnt lgkmcnt(1)")
    g(f"v_add_f32 v{vX+4}, v{vX+4}, v{vX+6}")
    g(f"v_add_f32 v{vX+5}, v{vX+5}, v{vX+7}")
    g(f"v_add_f32 v{vX}, v{vX}, v{vX+4}")
    g(f"v_add_f32 v{vX+1}, v{vX+1}, v{vX+5}")
    g("s_waitcnt lgkmcnt(0)")
    g(f"v_mul_f32 v{vP}, v{vX}, v{vT0}")
    g(f"v_mul_f32 v{vP+1}, v{vX+1}, v{vT0}")
    if "nopub" not in diag:
        g(f"buffer_store_dwordx4 v[{vP}:{vP+3}], v{vPo}, s[{srdW}:{srdW+3}], s{sPub} offen sc1")
    if stamps:
        stamp(2)
        g("s_waitcnt vmcnt(0)")
        stamp(4)
        dump_stamps(6)
    g.lab("L_end")
    g("s_endpgm")

    vLane = vT2
    hO = 64
    hML = 32
    hG = 40
    hOffO, hOffML, hOffOut, hLf, hLml, hOffPub = 1, 2, 3, 4, 6, 7
    srdO, srdV = 48, 52
    sMLr, sMLw, sOut, sDry, sCnt = 39, 40, 41, 62, 63
    sO = [46, 47, 60, 61]
    sPm = [26, 28, 30, 32, 34]
    g.raw(".p2align 6")
    g.lab("L_helper")
    g(f"v_lshrrev_b32 v12, 3, v{vLane}")
    g(f"v_and_b32 v13, 7, v{vLane}")
    g(f"v_lshlrev_b32 v{hOffPub}, 4, v13")
    g(f"v_lshl_add_u32 v{hOffO}, v12, 14, v{hOffPub}")
    g(f"v_lshlrev_b32 v{hOffOut}, 2, v13")
    g(f"v_and_b32 v14, 3, v{vLane}")
    g(f"v_lshlrev_b32 v{hLml}, 5, v14")
    g(f"v_lshlrev_b32 v{hLf}, 2, v14")
    g(f"v_lshrrev_b32 v15, 2, v{vLane}")
    g(f"v_lshlrev_b32 v14, 4, v14")
    g(f"v_lshl_add_u32 v{hOffML}, v15, 7, v14")
    g("v_mov_b32 v16, 0")
    g("v_mov_b32 v17, 0")
    g("s_waitcnt lgkmcnt(0)")
    epoch_load()
    g(f"s_load_dword s{sCL}, s[12:13], 0")
    ws_srd()
    g(f"s_add_u32 s{srdV}, s8, s{sT1}")
    g(f"s_addc_u32 s{srdV+1}, s9, 0")
    g(f"s_sub_u32 s{srdV+2}, {hex(KV_BYTES)}, s{sT1}")
    g(f"s_mov_b32 s{srdV+3}, 0x20000")
    g(f"s_mov_b32 s{srdO}, s14")
    g(f"s_mov_b32 s{srdO+1}, s15")
    g(f"s_mov_b32 s{srdO+2}, 0x2000")
    g(f"s_mov_b32 s{srdO+3}, 0x20000")
    g(f"s_lshl_b32 s{sT1}, s{sH}, 17")
    g(f"s_lshl_b32 s{sT2}, s{sJ}, 7")
    g(f"s_add_u32 s{sO[0]}, s{sT1}, s{sT2}")
    for i in range(1, 4):
        g(f"s_add_u32 s{sO[i]}, s{sO[0]}, {hex(4096*i)}")
    g(f"s_lshl_b32 s{sMLr}, s{sH}, 12")
    g(f"s_add_u32 s{sMLr}, s{sMLr}, {hex(ML_BASE)}")
    g(f"s_add_u32 s{sMLw}, s{sMLr}, s{sT2}")
    g(f"s_lshl_b32 s{sOut}, s{sH}, 10")
    g(f"s_lshl_b32 s{sT0}, s{sJ}, 5")
    g(f"s_add_u32 s{sOut}, s{sOut}, s{sT0}")
    g("s_waitcnt lgkmcnt(0)")
    make_tag()
    clamp_cl()
    g(f"v_mov_b32 v{hG+2}, s{sTag}")
    g(f"v_mov_b32 v{hG+3}, s{sTag+1}")
    if "nohelp" in diag:
        g("s_barrier")
        g("s_barrier")
        for i in range(1, 6):
            stamp(i)
        dump_stamps(6)
        g("s_endpgm")
    g("s_barrier")
    g(f"ds_read_b128 v[20:23], v{hLml} offset:{MLO}")
    g(f"ds_read_b128 v[24:27], v{hLml} offset:{MLO+16}")
    g("s_waitcnt lgkmcnt(0)")
    g(f"v_max3_f32 v12, v20, v22, v24")
    g(f"v_max_f32 v{hG}, v12, v26")
    for w in range(4):
        g(f"v_sub_f32 v{20+2*w}, v{20+2*w}, v{hG}")
    for w in range(4):
        g(f"v_exp_f32 v{20+2*w}, v{20+2*w}")
    g(f"v_mul_f32 v{hG+1}, v20, v21")
    for w in range(1, 4):
        g(f"v_fmac_f32 v{hG+1}, v{20+2*w}, v{21+2*w}")
    g("s_mov_b64 exec, 0xff")
    g(f"buffer_store_dwordx4 v[{hG}:{hG+3}], v{hOffPub}, s[{srdW}:{srdW+3}], s{sMLw} offen sc1")
    g("s_mov_b64 exec, -1")
    g(f"s_mov_b32 s{sCnt}, 0")
    g.lab("L_pml")
    g(f"s_sleep {mls}")
    g(f"buffer_load_dwordx4 v[{hML}:{hML+3}], v{hOffML}, s[{srdW}:{srdW+3}], s{sMLr} offen sc1")
    g(f"buffer_load_dwordx4 v[{hML+4}:{hML+7}], v{hOffML}, s[{srdW}:{srdW+3}], s{sMLr} offen offset:2048 sc1")
    g(f"s_add_u32 s{sCnt}, s{sCnt}, 1")
    g("s_waitcnt vmcnt(0)")
    g(f"v_cmp_ne_u64 s[{sPm[0]}:{sPm[0]+1}], s[{sTag}:{sTag+1}], v[{hML+2}:{hML+3}]")
    g(f"v_cmp_ne_u64 s[{sPm[1]}:{sPm[1]+1}], s[{sTag}:{sTag+1}], v[{hML+6}:{hML+7}]")
    g(f"s_cmp_ge_u32 s{sCnt}, {hex(SPIN // 4)}")
    g("s_cbranch_scc1 L_gotml")
    g(f"s_or_b64 s[{sPm[0]}:{sPm[0]+1}], s[{sPm[0]}:{sPm[0]+1}], s[{sPm[1]}:{sPm[1]+1}]")
    g("s_cbranch_scc1 L_pml")
    g.lab("L_gotml")
    stamp(1)
    def allred_pl(op, r, t):
        g("s_nop 1")
        g(f"{op}_dpp v{r}, v{r}, v{r} row_ror:4 row_mask:0xf bank_mask:0xf")
        g("s_nop 1")
        g(f"{op}_dpp v{r}, v{r}, v{r} row_ror:8 row_mask:0xf bank_mask:0xf")
        g(f"v_mov_b32 v{t}, v{r}")
        g("s_nop 1")
        g(f"v_permlane16_swap_b32 v{r}, v{t}")
        g(f"{op} v{r}, v{r}, v{t}")
        g(f"v_mov_b32 v{t}, v{r}")
        g("s_nop 1")
        g(f"v_permlane32_swap_b32 v{r}, v{t}")
        g(f"{op} v{r}, v{r}, v{t}")
    g(f"s_sub_u32 s{sT2}, 0x10000, s{sCL}")
    g(f"s_cmp_eq_u32 s{sT2}, 0")
    g(f"s_cselect_b32 s{sT0}, 0xff800000, {f32(SM2)}") if False else None
    g(f"s_mov_b32 s{sT0}, {f32(SM2)}")
    g(f"s_cmov_b32 s{sT0}, 0xff800000")
    g(f"v_max3_f32 v12, v{hML}, v{hML+4}, s{sT0}")
    allred_pl("v_max_f32", 12, 13)
    g(f"v_sub_f32 v14, v{hML}, v12")
    g(f"v_sub_f32 v15, v{hML+4}, v12")
    g(f"v_sub_f32 v18, s{sT0}, v12")
    g(f"v_sub_f32 v19, v{hG}, v12")
    g("v_exp_f32 v14, v14")
    g("v_exp_f32 v15, v15")
    g("v_exp_f32 v18, v18")
    g("v_exp_f32 v19, v19")
    g(f"v_cvt_f32_u32 v20, s{sT2}")
    g(f"v_mul_f32 v14, v14, v{hML+1}")
    g(f"v_fmac_f32 v14, v15, v{hML+5}")
    allred_pl("v_add_f32", 14, 13)
    g("v_fmac_f32 v14, v18, v20")
    g("v_rcp_f32 v14, v14")
    g(f"s_lshr_b32 s{sT1}, s{sJ}, 3")
    g("v_mul_f32 v19, v19, v14")
    g("v_mul_f32 v18, v18, v14")
    g("s_mov_b64 exec, 0xf")
    g(f"ds_write_b32 v{hLf}, v19 offset:{FLO}")
    g("s_mov_b64 exec, -1")
    g(f"v_readlane_b32 s{sT0}, v18, s{sT1}")
    g("s_nop 0")
    g(f"s_cmp_lg_u32 s{sT0}, 0")
    g("s_cbranch_scc1 L_slow")
    g.lab("L_slow_ret")
    if dry:
        g(f"s_mov_b32 s{sDry}, 1")
        g(f"s_mov_b32 s{sCnt}, {hex(SPIN)}")
        g(f"s_mov_b32 s{srdW+2}, 0")
        g("s_branch L_go")
    g.lab("L_real")
    g(f"s_mov_b32 s{srdW+2}, {hex(WS_BYTES)}")
    g(f"s_mov_b32 s{sDry}, 0")
    g(f"s_mov_b32 s{sCnt}, 0")
    g("s_waitcnt lgkmcnt(0)")
    g("s_barrier")
    stamp(2)
    if d0:
        g(f"s_sleep {d0}")
    g.lab("L_go")
    for i in range(4):
        g(f"s_mov_b64 s[{sPm[i]}:{sPm[i]+1}], -1")
    g.lab("L_poll")
    for i in range(4):
        g(f"s_mov_b64 exec, s[{sPm[i]}:{sPm[i]+1}]")
        g(f"s_cbranch_execz L_sk{i}")
        g(f"buffer_load_dwordx4 v[{hO+4*i}:{hO+4*i+3}], v{hOffO}, s[{srdW}:{srdW+3}], s{sO[i]} offen sc1")
        g.lab(f"L_sk{i}")
    g("s_mov_b64 exec, -1")
    g(f"s_add_u32 s{sCnt}, s{sCnt}, 1")
    g("s_waitcnt vmcnt(0)")
    for i in range(4):
        g(f"v_cmp_ne_u64 s[{sPm[i]}:{sPm[i]+1}], s[{sTag}:{sTag+1}], v[{hO+4*i+2}:{hO+4*i+3}]")
    g(f"v_add_f32 v18, v{hO}, v{hO+4}")
    g(f"v_add_f32 v19, v{hO+1}, v{hO+5}")
    g(f"v_add_f32 v20, v{hO+8}, v{hO+12}")
    g(f"v_add_f32 v21, v{hO+9}, v{hO+13}")
    g(f"s_cmp_ge_u32 s{sCnt}, {hex(SPIN)}")
    g("s_cbranch_scc1 L_got")
    g(f"s_or_b64 s[{sPm[4]}:{sPm[4]+1}], s[{sPm[0]}:{sPm[0]+1}], s[{sPm[1]}:{sPm[1]+1}]")
    g(f"s_or_b64 s[{sPm[4]}:{sPm[4]+1}], s[{sPm[4]}:{sPm[4]+1}], s[{sPm[2]}:{sPm[2]+1}]")
    g(f"s_or_b64 s[{sPm[4]}:{sPm[4]+1}], s[{sPm[4]}:{sPm[4]+1}], s[{sPm[3]}:{sPm[3]+1}]")
    g("s_cbranch_scc1 L_poll")
    g.lab("L_got")
    stamp(3)
    g("v_add_f32 v18, v18, v16")
    g("v_add_f32 v19, v19, v17")
    g("v_add_f32 v18, v18, v20")
    g("v_add_f32 v19, v19, v21")
    g("s_nop 1")
    g("v_permlane32_swap_b32 v18, v19")
    g("v_add_f32 v18, v18, v19")
    g("v_mov_b32 v19, v18")
    g("s_nop 1")
    g("v_permlane16_swap_b32 v18, v19")
    g("v_add_f32 v18, v18, v19")
    g("s_nop 1")
    g("v_add_f32_dpp v18, v18, v18 row_ror:8 row_mask:0xf bank_mask:0xf")
    g("v_mov_b32 v19, v18")
    g("s_nop 1")
    g("v_permlane32_swap_b32 v18, v19")
    g("v_cvt_pk_bf16_f32 v18, v18, v19")
    if dry:
        g(f"s_cmp_eq_u32 s{sDry}, 1")
        g("s_cbranch_scc1 L_real")
    g("s_mov_b64 exec, 0xff")
    g(f"buffer_store_dword v18, v{hOffOut}, s[{srdO}:{srdO+3}], s{sOut} offen {op}")
    g(f"s_cmp_eq_u32 s{sJ}, 0")
    g("s_cbranch_scc0 L_hdone")
    g("s_mov_b64 exec, 1")
    g("v_mov_b32 v14, 0")
    g(f"global_store_dwordx2 v14, v[{hG+2}:{hG+3}], s[{sEp}:{sEp+1}] {op}")
    g.lab("L_hdone")
    if stamps:
        stamp(4)
        g(f"s_mov_b32 s{sSt+10}, s{sCnt}")
        dump_stamps(6)
    g("s_endpgm")

    sB, sPh, sTok = 80, 81, 82
    g.lab("L_slow")
    g(f"v_lshrrev_b32 v23, 3, v{vLane}")
    g(f"s_and_b32 s{sT1}, s{sJ}, 7")
    g(f"s_lshl_b32 s{sT1}, s{sT1}, 5")
    g(f"v_lshl_add_u32 v24, v23, 11, v{hOffOut}")
    g(f"v_add_u32 v24, s{sT1}, v24")
    g("v_add_u32 v25, 0x4000, v24")
    g("v_add_u32 v26, 8, v23")
    g(f"s_lshr_b32 s{sB}, s{sCL}, 4")
    g.lab("L_slow_loop")
    g(f"s_cmp_lt_u32 s{sB}, 0x1000")
    g("s_cbranch_scc0 L_slow_end")
    g(f"s_lshl_b32 s{sT1}, s{sB}, 2")
    g(f"s_load_dword s{sPh}, s[10:11], s{sT1}")
    g(f"s_lshl_b32 s{sTok}, s{sB}, 4")
    g(f"s_sub_i32 s{sTok}, s{sCL}, s{sTok}")
    g("s_waitcnt lgkmcnt(0)")
    g(f"s_lshl_b32 s{sPh}, s{sPh}, 15")
    g(f"buffer_load_dword v27, v24, s[{srdV}:{srdV+3}], s{sPh} offen")
    g(f"buffer_load_dword v28, v25, s[{srdV}:{srdV+3}], s{sPh} offen")
    g(f"v_cmp_le_i32 vcc, s{sTok}, v23")
    g(f"v_cmp_le_i32 s[84:85], s{sTok}, v26")
    g("s_waitcnt vmcnt(0)")
    g("v_cndmask_b32 v27, 0, v27, vcc")
    g("v_cndmask_b32 v28, 0, v28, s[84:85]")
    g("v_lshlrev_b32 v29, 16, v27")
    g("v_and_b32 v27, 0xffff0000, v27")
    g("v_add_f32 v16, v16, v29")
    g("v_add_f32 v17, v17, v27")
    g("v_lshlrev_b32 v29, 16, v28")
    g("v_and_b32 v28, 0xffff0000, v28")
    g("v_add_f32 v16, v16, v29")
    g("v_add_f32 v17, v17, v28")
    g(f"s_add_u32 s{sB}, s{sB}, 1")
    g("s_branch L_slow_loop")
    g.lab("L_slow_end")
    g(f"v_mul_f32 v16, s{sT0}, v16")
    g(f"v_mul_f32 v17, s{sT0}, v17")
    g("s_branch L_slow_ret")
    g.raw('.section .rodata,"a"')
    g.raw(".p2align 6")
    g.raw(kd(main, NV, 96))
    return g.text()

if __name__ == "__main__":
    import argparse
    ap = argparse.ArgumentParser()
    ap.add_argument("-o", default=f"cdna_kernels/{NAME}.s")
    ap.add_argument("--da", default="5656")
    ap.add_argument("--db", default="8888")
    ap.add_argument("--bmask", default="0x22")
    ap.add_argument("--stamps", action="store_true")
    ap.add_argument("--nodry", action="store_true")
    ap.add_argument("--d0", type=int, default=8)
    ap.add_argument("--mls", type=int, default=64)
    ap.add_argument("--diag", default="")
    ap.add_argument("--op", default="")
    a = ap.parse_args()
    open(a.o, "w").write(gen(DA=tuple(map(int, a.da)), DB=tuple(map(int, a.db)), bmask=int(a.bmask, 16), stamps=a.stamps, dry=not a.nodry, d0=a.d0, diag=a.diag, mls=a.mls, op=a.op))
```

```python
import sys, struct, math

NAME = "standalone__paged_block_table_kv_pagedattention__decode"
KV_BYTES = 4100 * 32768
WS_BYTES = 537395200
ML_BASE = 1 << 20
EP_BASE = ML_BASE + 0x8000
STAMP_BASE = 2 << 20
INC_LO, INC_HI = 0x7F4A7C15, 0x9E3779B9
SPIN = 0x200000
LOG2E = math.log2(math.e)
SM2 = -998244352.0 * LOG2E

def f32(x):
    return "0x%08x" % struct.unpack("<I", struct.pack("<f", x))[0]

HEADER = """; Kernarg layout for this problem (64 bytes, ptrs only, base s[0:1]):
"""

class G:
    def __init__(s):
        s.L = []
    def __call__(s, t):
        s.L.append("    " + t)
    def lab(s, t):
        s.L.append(t + ":")
    def raw(s, t):
        s.L.append(t)
    def text(s):
        return "\n".join(s.L) + "\n"

def kd(name, vgpr, sgpr):
    acc = (vgpr + 3) // 4 * 4
    return f""".amdhsa_kernel {name}
  .amdhsa_next_free_vgpr {vgpr}
  .amdhsa_next_free_sgpr {sgpr}
  .amdhsa_accum_offset {acc}
  .amdhsa_group_segment_fixed_size 0
  .amdhsa_kernarg_size 64
  .amdhsa_user_sgpr_count 2
  .amdhsa_user_sgpr_kernarg_segment_ptr 1
  .amdhsa_system_sgpr_workgroup_id_x 1
.end_amdhsa_kernel
"""

def schedule(dist):
    issue = {p: [] for p in range(4)}
    for i in range(40, 44):
        c = i - dist[i % 4]
        issue[c % 4].append((i // 4 - c // 4, i % 4))
    t = [i - dist[i % 4] for i in range(80)]
    assert all(t[i] <= t[i + 1] for i in range(79)), "issue order must be monotone"
    for p in issue:
        issue[p].sort()
    wait = {}
    for p in range(4):
        c = 40 + p
        last = max(i for i in range(80) if t[i] < c)
        wait[p] = last - c
    npro = sum(1 for i in range(80) if t[i] < 0)
    assert all(1 <= du <= 2 for p in issue for du, _ in issue[p]) and max(dist) <= 8
    return issue, wait, npro

def gen(DA=(6,6,6,6), DB=(8,8,8,8), bmask=0x22, stamps=False, dry=True, d0=8, diag="", mls=64, op="sc1", enc=None):
    g = G()
    pol = " nt"
    LST = 7
    STRIDE_B = 128
    MAXB = 32
    MLO = 32768
    FLO = MLO + 128
    vK0, vK1, vV0, vV1 = 1, 2, 3, 4
    vMLw, vBT, vMLr = 5, 6, 7
    vQ = 8
    vA0, vA1 = 12, 16
    vM, vL, vSc, vTok = 20, 21, 22, 23
    vMsk0, vMsk1, vS, vSn = 24, 25, 26, 27
    vT0, vT1, vT2, vNEG = 28, 29, 30, 31
    vD = 32
    vI = {(1, 0): 48, (1, 1): 49, (2, 0): 50, (2, 1): 51}
    vP = 52
    vAw, vOr, vPo, vSa, vFr = 56, 57, 58, 59, 60
    vR = 64
    vX = 96
    NV = 104
    sW, sH, sJ, sU = 3, 36, 37, 38
    sS, sN, sRem, sT0, sT1, sT2 = 39, 40, 41, 42, 43, 44
    sCL = 45
    sOf = {1: 46, 2: 47}
    srdI = {1: 48, 2: 52}
    srdW = 56
    sPub = 62
    sKb, sVb = 26, 28
    sMk = {1: 30, 2: 32}
    sQm = [34, 60, 84]
    sE, sEp, sTag = 20, 22, 24
    sSt = 64
    def stamp(i):
        if stamps:
            g(f"s_memrealtime s[{sSt + 2*i}:{sSt + 2*i + 1}]")
    def dump_stamps(n, helper=False):
        if not stamps:
            return
        if enc is not None:
            g("s_waitcnt lgkmcnt(0)")
            lab = "L_enc" + ("H" if helper else "P")
            if enc[0] == "X":
                if not helper:
                    return
                g(f"s_getreg_b32 s{sT1}, hwreg(HW_REG_XCC_ID)")
                g(f"s_and_b32 s{sT1}, s{sT1}, 7")
                g(f"s_cmp_eq_u32 s{sT1}, {int(enc[1:])}")
                g(f"s_cbranch_scc0 {lab}_e")
                g(f"s_add_u32 s{sT0}, s{sSt}, 6000")
            elif (enc[0] == "H") == helper:
                g(f"s_add_u32 s{sT0}, s{sSt+2*int(enc[1:])}, 4000")
            else:
                return
            g.lab(lab)
            g("s_sleep 1")
            g(f"s_memrealtime s[{sSt+12}:{sSt+13}]")
            g("s_waitcnt lgkmcnt(0)")
            g(f"s_sub_u32 s{sT1}, s{sSt+12}, s{sT0}")
            g(f"s_cmp_lt_i32 s{sT1}, 0")
            g(f"s_cbranch_scc1 {lab}")
            g.lab(lab + "_e")
            return
        g("s_mov_b64 exec, 1")
        g("s_waitcnt lgkmcnt(0)")
        g(f"s_mul_i32 s{sT0}, s2, 5")
        g(f"s_add_u32 s{sT0}, s{sT0}, s{sW}")
        g(f"s_lshl_b32 s{sT0}, s{sT0}, 6")
        g(f"s_add_u32 s{sT0}, s{sT0}, {hex(STAMP_BASE)}")
        g("v_mov_b32 v5, 0")
        for i in range(n):
            g(f"v_mov_b32 v{32+i}, s{sSt+2*i}")
        g(f"s_getreg_b32 s{sT1}, hwreg(HW_REG_XCC_ID)")
        g(f"v_mov_b32 v{32+6}, s{sT1}")
        g(f"s_getreg_b32 s{sT1}, hwreg(HW_REG_HW_ID)")
        g(f"v_mov_b32 v{32+7}, s{sT1}")
        g(f"buffer_store_dwordx4 v[32:35], v5, s[{srdW}:{srdW+3}], s{sT0} offen")
        g(f"buffer_store_dwordx4 v[36:39], v5, s[{srdW}:{srdW+3}], s{sT0} offen offset:16")
    def ws_srd():
        g(f"s_mov_b32 s{srdW}, s18")
        g(f"s_mov_b32 s{srdW+1}, s19")
        g(f"s_mov_b32 s{srdW+2}, {hex(WS_BYTES)}")
        g(f"s_mov_b32 s{srdW+3}, 0x20000")
    def epoch_load():
        g(f"s_lshl_b32 s{sEp}, s{sH}, 7")
        g(f"s_add_u32 s{sEp}, s{sEp}, {hex(EP_BASE)}")
        g(f"s_add_u32 s{sEp}, s18, s{sEp}")
        g(f"s_addc_u32 s{sEp+1}, s19, 0")
        g(f"s_load_dwordx2 s[{sE}:{sE+1}], s[{sEp}:{sEp+1}], 0")
    def make_tag():
        g(f"s_add_u32 s{sTag}, s{sE}, {hex(INC_LO)}")
        g(f"s_addc_u32 s{sTag+1}, s{sE+1}, {hex(INC_HI)}")
    def clamp_cl():
        g(f"s_max_i32 s{sCL}, s{sCL}, 0")
        g(f"s_min_i32 s{sCL}, s{sCL}, 0x10000")
    def ld(half, pos, vo, srd, so):
        r = vR + 16 * half + 4 * pos
        off = " offset:2048" if (pos & 1) else ""
        g(f"buffer_load_dwordx4 v[{r}:{r+3}], v{vo}, s[{srd}:{srd+3}], s{so} offen{off}{pol}")

    schA, schB = schedule(DA), schedule(DB)
    two = DA != DB
    assert schA[2] <= schB[2]
    main = NAME + "_kernel"
    g.raw(HEADER.rstrip("\n"))
    g.raw(f"; @launch grid=(256,1,1) block=(320,1,1) lds={FLO+128}")
    g.raw('.amdgcn_target "amdgcn-amd-amdhsa--gfx950"')
    g.raw(".text")
    g.raw(f".globl {main}")
    g.raw(".p2align 8")
    g.raw(f".type {main},@function")
    g.lab(main)
    g("s_load_dwordx16 s[4:19], s[0:1], 0")
    stamp(0)
    g(f"v_readfirstlane_b32 s{sW}, v0")
    g("s_cmp_ge_u32 s2, 0x100")
    g("s_cbranch_scc1 L_end")
    g(f"v_and_b32 v{vT2}, 63, v0")
    g(f"s_bfe_u32 s{sH}, s2, 0x30003")
    g(f"s_and_b32 s{sJ}, s2, 7")
    g(f"s_lshr_b32 s{sT0}, s2, 6")
    g(f"s_lshr_b32 s{sW}, s{sW}, 6")
    g(f"s_lshl3_add_u32 s{sJ}, s{sT0}, s{sJ}")
    g(f"s_lshl_b32 s{sT1}, s{sH}, 8")
    g(f"s_cmp_eq_u32 s{sW}, 4")
    g("s_cbranch_scc1 L_helper")
    g(f"s_lshl_b32 s{sU}, s{sW}, 5")
    g(f"s_add_u32 s{sU}, s{sU}, s{sJ}")
    g(f"s_lshl_b32 s{sT0}, s{sU}, 2")
    g(f"v_lshrrev_b32 v{vX}, 4, v{vT2}")
    g(f"v_and_b32 v{vX+1}, 3, v{vT2}")
    g(f"v_lshlrev_b32 v{vX+2}, 4, v{vX+1}")
    g(f"v_lshl_add_u32 v{vX+2}, v{vX}, 6, v{vX+2}")
    g(f"v_bfe_u32 v{vX+3}, v{vT2}, 2, 2")
    g(f"v_lshl_add_u32 v{vK0}, v{vX+3}, 13, v{vX+2}")
    g(f"v_add_u32 v{vK1}, 0x1000, v{vK0}")
    g(f"v_lshl_add_u32 v{vT1}, v{vX+3}, 8, v{vX+2}")
    g(f"v_and_b32 v{vT0}, {MAXB-1}, v{vT2}")
    g(f"v_lshlrev_b32 v{vT0}, {LST+2}, v{vT0}")
    g(f"s_sub_u32 s{srdI[2]+2}, {hex(KV_BYTES)}, s{sT1}")
    g(f"s_mov_b32 s{srdI[2]+3}, 0x20000")
    g("s_waitcnt lgkmcnt(0)")
    g(f"s_add_u32 s10, s10, s{sT0}")
    g("s_addc_u32 s11, s11, 0")
    g(f"s_load_dword s{sOf[1]}, s[10:11], 0")
    g(f"s_load_dword s{sOf[2]}, s[10:11], {STRIDE_B*4}")
    g(f"s_load_dword s{sCL}, s[12:13], 0")
    g(f"s_lshl2_add_u32 s4, s{sT1}, s4")
    g("s_addc_u32 s5, s5, 0")
    g(f"global_load_dword v{vBT}, v{vT0}, s[10:11]")
    g(f"global_load_dwordx4 v[{vQ}:{vQ+3}], v{vT1}, s[4:5]")
    g(f"s_add_u32 s{srdI[2]}, s6, s{sT1}")
    g(f"s_addc_u32 s{srdI[2]+1}, s7, 0")
    g("s_waitcnt lgkmcnt(0)")
    g(f"s_lshl_b32 s{sOf[1]}, s{sOf[1]}, 15")
    g(f"s_lshl_b32 s{sOf[2]}, s{sOf[2]}, 15")
    def pro(i):
        ld(i // 4, i % 4, vK0 if (i & 2) == 0 else vK1, srdI[2], sOf[1 + i // 4])
    for i in range(schA[2]):
        pro(i)
    stamp(1)
    if two and schB[2] > schA[2]:
        g(f"s_bitcmp1_b32 {hex(bmask)}, s{sH}")
        g("s_cbranch_scc0 L_noextra")
        for i in range(schA[2], schB[2]):
            pro(i)
        g.lab("L_noextra")
    epoch_load()
    g(f"s_mov_b64 s[{sKb}:{sKb+1}], s[{srdI[2]}:{srdI[2]+1}]")
    g(f"s_add_u32 s{sVb}, s8, s{sT1}")
    g(f"s_addc_u32 s{sVb+1}, s9, 0")
    g(f"s_mov_b32 s{srdI[1]+2}, s{srdI[2]+2}")
    g(f"s_mov_b32 s{srdI[1]+3}, 0x20000")
    g(f"s_mov_b64 s[{sMk[2]}:{sMk[2]+1}], 0")
    ws_srd()
    g(f"v_and_b32 v{vX+4}, 15, v{vT2}")
    g(f"v_lshlrev_b32 v{vX+4}, 4, v{vX+4}")
    g(f"v_lshl_add_u32 v{vV0}, v{vX}, 13, v{vX+4}")
    g(f"v_add_u32 v{vV1}, 0x1000, v{vV0}")
    g(f"v_lshl_add_u32 v{vPo}, v{vX}, 10, v{vX+4}")
    g(f"s_lshl_b32 s{sPub}, s{sH}, 5")
    g(f"s_add_u32 s{sPub}, s{sPub}, s{sJ}")
    g(f"s_lshl_b32 s{sPub}, s{sPub}, 4")
    g(f"s_add_u32 s{sPub}, s{sPub}, s{sW}")
    g(f"s_lshl_b32 s{sPub}, s{sPub}, 8")
    g(f"s_lshl_b32 s{sT0}, s{sW}, 13")
    g(f"v_lshl_add_u32 v{vAw}, v{vT2}, 4, s{sT0}")
    g(f"v_lshl_add_u32 v{vSa}, v{vT2}, 2, s{sT0}")
    g(f"v_lshlrev_b32 v{vOr}, 4, v{vX+3}")
    g(f"v_lshl_add_u32 v{vOr}, v{vX}, 8, v{vOr}")
    g(f"v_bfe_u32 v{vX+5}, v{vT2}, 1, 1")
    g(f"v_lshl_add_u32 v{vOr}, v{vX+5}, 10, v{vOr}")
    g(f"v_and_b32 v{vX+5}, 1, v{vT2}")
    g(f"v_lshl_add_u32 v{vOr}, v{vX+5}, 3, v{vOr}")
    g(f"s_lshl_b32 s{sT0}, s{sW}, 6")
    g(f"v_add_u32 v{vOr}, s{sT0}, v{vOr}")
    g(f"v_lshlrev_b32 v{vFr}, 2, v{vX}")
    g(f"v_lshlrev_b32 v{vMLr}, 5, v{vX+3}")
    g(f"s_lshl_b32 s{sT0}, s{sW}, 3")
    g(f"v_add_u32 v{vMLw}, s{sT0}, v{vMLr}")
    g(f"v_lshl_add_u32 v{vTok}, v{vX}, 2, v{vX+1}")
    g(f"v_mov_b32 v{vSc}, {f32(128 ** -0.5 * LOG2E)}")
    g(f"v_mov_b32 v{vNEG}, 0xff800000")
    g(f"v_mov_b32 v{vM}, {f32(-1e30)}")
    g(f"v_mov_b32 v{vL}, 0")
    for r in range(8):
        g(f"v_mov_b32 v{vA0+r}, 0")
    for x in range(3):
        m32 = hex(0x11111111 << (x + 1))
        g(f"s_mov_b32 s{sQm[x]}, {m32}")
        g(f"s_mov_b32 s{sQm[x]+1}, {m32}")
    g(f"v_lshlrev_b32 v{vX+5}, 4, v{vX+5}")
    g(f"v_mov_b32 v{vX+6}, 0xffff")
    g(f"v_lshlrev_b32 v{vX+6}, v{vX+5}, v{vX+6}")
    g(f"v_cmp_gt_u32 vcc, 2, v{vX+1}")
    g(f"v_bfrev_b32 v{vX+5}, 1")
    g(f"s_mov_b32 s{sS}, 0")
    g(f"v_cndmask_b32 v{vMsk0}, 0, v{vX+6}, vcc")
    g(f"v_xor_b32 v{vMsk1}, v{vMsk0}, v{vX+6}")
    clamp_cl()
    g(f"s_add_u32 s{sN}, s{sCL}, 15")
    g(f"s_lshr_b32 s{sN}, s{sN}, 4")
    g(f"s_add_u32 s{sN}, s{sN}, {STRIDE_B-1}")
    g(f"s_sub_u32 s{sN}, s{sN}, s{sU}")
    g(f"s_lshr_b32 s{sN}, s{sN}, {LST}")
    g(f"s_max_u32 s{sN}, s{sN}, 2")
    g(f"s_lshl_b32 s{sT0}, s{sU}, 4")
    g(f"s_sub_i32 s{sRem}, s{sCL}, s{sT0}")
    g(f"v_cmp_gt_u32 vcc, s{sN}, v{vT2}")
    g(f"s_waitcnt vmcnt({schA[2]+1})")
    g(f"v_lshlrev_b32 v{vBT}, 15, v{vBT}")
    g(f"v_cndmask_b32 v{vBT}, v{vX+5}, v{vBT}, vcc")
    if two:
        g(f"s_bitcmp1_b32 {hex(bmask)}, s{sH}")
        g("s_cbranch_scc1 L_k0B")

    D = lambda m, r=0: vD + 4 * m + r
    def phases(sch, sfx):
        issue, wait, _ = sch
        used = sorted({(du, pos >> 1) for p in issue for du, pos in issue[p]})
        dus = sorted({du for du, _ in used})
        for half in (0, 1):
            g.lab(f"L_k{half}{sfx}")
            g(f"s_add_u32 s{sT0}, s{sS}, 2")
            g(f"s_mov_b32 s{sOf[1]}, s{sOf[2]}")
            if 1 in dus:
                g(f"s_mov_b64 s[{srdI[1]}:{srdI[1]+1}], s[{srdI[2]}:{srdI[2]+1}]")
                g(f"s_mov_b64 s[{sMk[1]}:{sMk[1]+1}], s[{sMk[2]}:{sMk[2]+1}]")
            g(f"s_cmp_ge_u32 s{sT0}, s{sN}")
            g(f"s_cselect_b32 s{sT1}, s{sN}, 0")
            g(f"s_cselect_b64 s[{srdI[2]}:{srdI[2]+1}], s[{sVb}:{sVb+1}], s[{sKb}:{sKb+1}]")
            g(f"s_cselect_b64 s[{sMk[2]}:{sMk[2]+1}], -1, 0")
            g(f"s_sub_u32 s{sT0}, s{sT0}, s{sT1}")
            g(f"v_readlane_b32 s{sOf[2]}, v{vBT}, s{sT0}")
            for du, o in used:
                g(f"v_cndmask_b32 v{vI[(du, o)]}, v{vK0 + o}, v{vV0 + o}, s[{sMk[du]}:{sMk[du]+1}]")
            g(f"v_cmp_gt_i32 vcc, s{sRem}, v{vTok}")
            g(f"s_add_u32 s{sS}, s{sS}, 1")
            g(f"s_sub_i32 s{sRem}, s{sRem}, {hex(16*STRIDE_B)}")
            for p in range(4):
                r = vR + 16 * half + 4 * p
                g(f"s_waitcnt vmcnt({wait[p]})")
                g(f"v_mfma_f32_16x16x32_bf16 v[{D(p)}:{D(p,3)}], v[{r}:{r+3}], v[{vQ}:{vQ+3}], 0")
                for du, pos in issue[p]:
                    ld((half + du) & 1, pos, vI[(du, pos >> 1)], srdI[du], sOf[du])
            g(f"s_nop {4 - len(issue[3])}")
            for r in range(4):
                for m in range(4):
                    op = "v_mul_f32_dpp" if r == 0 else "v_fmac_f32_dpp"
                    g(f"{op} v{D(m)}, v{D(m,r)}, v{vSc} quad_perm:[{r},{r},{r},{r}] row_mask:0xf bank_mask:0xf")
            g(f"v_cndmask_b32 v{vS}, v{D(0)}, v{D(1)}, s[{sQm[0]}:{sQm[0]+1}]")
            g(f"v_cndmask_b32 v{vS}, v{vS}, v{D(2)}, s[{sQm[1]}:{sQm[1]+1}]")
            g(f"v_cndmask_b32 v{vS}, v{vS}, v{D(3)}, s[{sQm[2]}:{sQm[2]+1}]")
            g(f"v_cndmask_b32 v{vS}, v{vNEG}, v{vS}, vcc")
            g(f"ds_write_b32 v{vSa}, v{vS}")
            g(f"v_max_f32 v{vT0}, v{vM}, v{vS}")
            g(f"v_sub_f32 v{vT1}, v{vM}, v{vT0}")
            g(f"v_sub_f32 v{vT2}, v{vS}, v{vT0}")
            g(f"v_exp_f32 v{vT1}, v{vT1}")
            g(f"v_exp_f32 v{vT2}, v{vT2}")
            g(f"v_mov_b32 v{vM}, v{vT0}")
            g(f"v_add_u32 v{vSa}, 0x100, v{vSa}")
            g(f"v_fma_f32 v{vL}, v{vL}, v{vT1}, v{vT2}")
            g(f"s_cmp_lt_u32 s{sS}, s{sN}")
            if half == 0:
                g(f"s_cbranch_scc0 L_mid{sfx}")
            else:
                g(f"s_cbranch_scc1 L_k0{sfx}")
        g.lab(f"L_mid{sfx}")
        def allred(op, r, t):
            g(f"{op}_dpp v{r}, v{r}, v{r} quad_perm:[1,0,3,2] row_mask:0xf bank_mask:0xf")
            g("s_nop 1")
            g(f"{op}_dpp v{r}, v{r}, v{r} quad_perm:[2,3,0,1] row_mask:0xf bank_mask:0xf")
            g(f"v_mov_b32 v{t}, v{r}")
            g("s_nop 1")
            g(f"v_permlane16_swap_b32 v{r}, v{t}")
            g(f"{op} v{r}, v{r}, v{t}")
            g(f"v_mov_b32 v{t}, v{r}")
            g("s_nop 1")
            g(f"v_permlane32_swap_b32 v{r}, v{t}")
            g(f"{op} v{r}, v{r}, v{t}")
        stamp(5)
        g(f"s_lshl_b32 s{sT0}, s{sN}, 8")
        g(f"v_subrev_u32 v{vSa}, s{sT0}, v{vSa}")
        allred("v_max_f32", vM, vT1)
        g(f"v_sub_f32 v{vT0}, v{vT0}, v{vM}")
        g(f"v_exp_f32 v{vT0}, v{vT0}")
        g(f"ds_read_b32 v{vSn}, v{vSa}")
        g(f"v_mul_f32 v{vL}, v{vL}, v{vT0}")
        g("s_nop 1")
        allred("v_add_f32", vL, vT1)
        g("s_mov_b64 exec, 0x1111")
        g(f"ds_write_b64 v{vMLw}, v[{vM}:{vL}] offset:{MLO}")
        g("s_mov_b64 exec, -1")
        g("s_waitcnt lgkmcnt(0)")
        g("s_barrier")
        g(f"ds_read_b128 v[{vX}:{vX+3}], v{vMLr} offset:{MLO}")
        g(f"ds_read_b128 v[{vX+4}:{vX+7}], v{vMLr} offset:{MLO+16}")
        make_tag()
        g(f"v_mov_b32 v{vP+2}, s{sTag}")
        g(f"v_mov_b32 v{vP+3}, s{sTag+1}")
        g(f"s_mov_b32 s{sS}, 0")
        g("s_waitcnt lgkmcnt(0)")
        g(f"v_max3_f32 v{vM}, v{vX}, v{vX+2}, v{vX+4}")
        g(f"v_max_f32 v{vM}, v{vM}, v{vX+6}")
        g(f"s_bitcmp1_b32 s{sN}, 0")
        g(f"s_cbranch_scc1 L_v1{sfx}")
        for half in (0, 1):
            g.lab(f"L_v{half}{sfx}")
            g(f"s_add_u32 s{sT0}, s{sS}, 2")
            g(f"s_mov_b32 s{sOf[1]}, s{sOf[2]}")
            g(f"v_readlane_b32 s{sOf[2]}, v{vBT}, s{sT0}")
            g("s_waitcnt lgkmcnt(0)")
            g(f"v_sub_f32 v{vS}, v{vSn}, v{vM}")
            g(f"v_exp_f32 v{vS}, v{vS}")
            g(f"ds_read_b32 v{vSn}, v{vSa} offset:256")
            g(f"v_cvt_pk_bf16_f32 v{vS}, v{vS}, v{vS}")
            g(f"v_add_u32 v{vSa}, 0x100, v{vSa}")
            g(f"s_add_u32 s{sS}, s{sS}, 1")
            for m in range(4):
                g(f"v_and_b32_dpp v{D(m)}, v{vS}, v{vMsk0} quad_perm:[{m},{m},{m},{m}] row_mask:0xf bank_mask:0xf")
                g(f"v_and_b32_dpp v{D(m,1)}, v{vS}, v{vMsk1} quad_perm:[{m},{m},{m},{m}] row_mask:0xf bank_mask:0xf")
            g(f"s_cmp_lt_u32 s{sS}, s{sN}")
            for p in range(4):
                r = vR + 16 * half + 4 * p
                g(f"s_waitcnt vmcnt({wait[p]})")
                g(f"v_mfma_f32_16x16x16_bf16 v[{vA0}:{vA0+3}], v[{D(p)}:{D(p,1)}], v[{r}:{r+1}], v[{vA0}:{vA0+3}]")
                g(f"v_mfma_f32_16x16x16_bf16 v[{vA1}:{vA1+3}], v[{D(p)}:{D(p,1)}], v[{r+2}:{r+3}], v[{vA1}:{vA1+3}]")
                if p == 3:
                    g("s_cbranch_scc0 L_fin")
                for du, pos in issue[p]:
                    ld((half + du) & 1, pos, vV0 + (pos >> 1), srdI[2], sOf[du])
            if half == 1:
                g(f"s_branch L_v0{sfx}")

    if two:
        phases(schA, "A")
        phases(schB, "B")
    else:
        phases(schA, "A")

    g.lab("L_fin")
    g("s_nop 6")
    stamp(3)
    g(f"ds_write_b128 v{vAw}, v[{vA0}:{vA0+3}]")
    g(f"ds_write_b128 v{vAw}, v[{vA1}:{vA1+3}] offset:1024")
    g("s_waitcnt lgkmcnt(0)")
    g("s_barrier")
    for w in range(4):
        g(f"ds_read_b64 v[{vX+2*w}:{vX+2*w+1}], v{vOr} offset:{8192*w}")
    g(f"ds_read_b32 v{vT0}, v{vFr} offset:{FLO}")
    g("s_waitcnt lgkmcnt(3)")
    g(f"v_add_f32 v{vX}, v{vX}, v{vX+2}")
    g(f"v_add_f32 v{vX+1}, v{vX+1}, v{vX+3}")
    g("s_waitcnt lgkmcnt(1)")
    g(f"v_add_f32 v{vX+4}, v{vX+4}, v{vX+6}")
    g(f"v_add_f32 v{vX+5}, v{vX+5}, v{vX+7}")
    g(f"v_add_f32 v{vX}, v{vX}, v{vX+4}")
    g(f"v_add_f32 v{vX+1}, v{vX+1}, v{vX+5}")
    g("s_waitcnt lgkmcnt(0)")
    g(f"v_mul_f32 v{vP}, v{vX}, v{vT0}")
    g(f"v_mul_f32 v{vP+1}, v{vX+1}, v{vT0}")
    if "nopub" not in diag:
        g(f"buffer_store_dwordx4 v[{vP}:{vP+3}], v{vPo}, s[{srdW}:{srdW+3}], s{sPub} offen sc1")
    if stamps:
        stamp(2)
        g("s_waitcnt vmcnt(0)")
        stamp(4)
        dump_stamps(6)
    g.lab("L_end")
    g("s_endpgm")

    vLane = vT2
    hO = 64
    hML = 32
    hG = 40
    hOffO, hOffML, hOffOut, hLf, hLml, hOffPub = 1, 2, 3, 4, 6, 7
    srdO, srdV = 48, 52
    sMLr, sMLw, sOut, sDry, sCnt = 39, 40, 41, 62, 63
    sO = [46, 47, 60, 61]
    sPm = [26, 28, 30, 32, 34]
    g.raw(".p2align 6")
    g.lab("L_helper")
    g(f"v_lshrrev_b32 v12, 3, v{vLane}")
    g(f"v_and_b32 v13, 7, v{vLane}")
    g(f"v_lshlrev_b32 v{hOffPub}, 4, v13")
    g(f"v_lshl_add_u32 v{hOffO}, v12, 14, v{hOffPub}")
    g(f"v_lshlrev_b32 v{hOffOut}, 2, v13")
    g(f"v_and_b32 v14, 3, v{vLane}")
    g(f"v_lshlrev_b32 v{hLml}, 5, v14")
    g(f"v_lshlrev_b32 v{hLf}, 2, v14")
    g(f"v_lshrrev_b32 v15, 2, v{vLane}")
    g(f"v_lshlrev_b32 v14, 4, v14")
    g(f"v_lshl_add_u32 v{hOffML}, v15, 7, v14")
    g("v_mov_b32 v16, 0")
    g("v_mov_b32 v17, 0")
    g("s_waitcnt lgkmcnt(0)")
    epoch_load()
    g(f"s_load_dword s{sCL}, s[12:13], 0")
    ws_srd()
    g(f"s_add_u32 s{srdV}, s8, s{sT1}")
    g(f"s_addc_u32 s{srdV+1}, s9, 0")
    g(f"s_sub_u32 s{srdV+2}, {hex(KV_BYTES)}, s{sT1}")
    g(f"s_mov_b32 s{srdV+3}, 0x20000")
    g(f"s_mov_b32 s{srdO}, s14")
    g(f"s_mov_b32 s{srdO+1}, s15")
    g(f"s_mov_b32 s{srdO+2}, 0x2000")
    g(f"s_mov_b32 s{srdO+3}, 0x20000")
    g(f"s_lshl_b32 s{sT1}, s{sH}, 17")
    g(f"s_lshl_b32 s{sT2}, s{sJ}, 7")
    g(f"s_add_u32 s{sO[0]}, s{sT1}, s{sT2}")
    for i in range(1, 4):
        g(f"s_add_u32 s{sO[i]}, s{sO[0]}, {hex(4096*i)}")
    g(f"s_lshl_b32 s{sMLr}, s{sH}, 12")
    g(f"s_add_u32 s{sMLr}, s{sMLr}, {hex(ML_BASE)}")
    g(f"s_add_u32 s{sMLw}, s{sMLr}, s{sT2}")
    g(f"s_lshl_b32 s{sOut}, s{sH}, 10")
    g(f"s_lshl_b32 s{sT0}, s{sJ}, 5")
    g(f"s_add_u32 s{sOut}, s{sOut}, s{sT0}")
    g("s_waitcnt lgkmcnt(0)")
    make_tag()
    clamp_cl()
    g(f"v_mov_b32 v{hG+2}, s{sTag}")
    g(f"v_mov_b32 v{hG+3}, s{sTag+1}")
    if "nohelp" in diag:
        g("s_barrier")
        g("s_barrier")
        for i in range(1, 6):
            stamp(i)
        dump_stamps(6)
        g("s_endpgm")
    g("s_barrier")
    g(f"ds_read_b128 v[20:23], v{hLml} offset:{MLO}")
    g(f"ds_read_b128 v[24:27], v{hLml} offset:{MLO+16}")
    g("s_waitcnt lgkmcnt(0)")
    g(f"v_max3_f32 v12, v20, v22, v24")
    g(f"v_max_f32 v{hG}, v12, v26")
    for w in range(4):
        g(f"v_sub_f32 v{20+2*w}, v{20+2*w}, v{hG}")
    for w in range(4):
        g(f"v_exp_f32 v{20+2*w}, v{20+2*w}")
    g(f"v_mul_f32 v{hG+1}, v20, v21")
    for w in range(1, 4):
        g(f"v_fmac_f32 v{hG+1}, v{20+2*w}, v{21+2*w}")
    g("s_mov_b64 exec, 0xff")
    g(f"buffer_store_dwordx4 v[{hG}:{hG+3}], v{hOffPub}, s[{srdW}:{srdW+3}], s{sMLw} offen sc1")
    g("s_mov_b64 exec, -1")
    g(f"s_mov_b32 s{sCnt}, 0")
    g.lab("L_pml")
    g(f"s_sleep {mls}")
    g(f"buffer_load_dwordx4 v[{hML}:{hML+3}], v{hOffML}, s[{srdW}:{srdW+3}], s{sMLr} offen sc1")
    g(f"buffer_load_dwordx4 v[{hML+4}:{hML+7}], v{hOffML}, s[{srdW}:{srdW+3}], s{sMLr} offen offset:2048 sc1")
    g(f"s_add_u32 s{sCnt}, s{sCnt}, 1")
    g("s_waitcnt vmcnt(0)")
    g(f"v_cmp_ne_u64 s[{sPm[0]}:{sPm[0]+1}], s[{sTag}:{sTag+1}], v[{hML+2}:{hML+3}]")
    g(f"v_cmp_ne_u64 s[{sPm[1]}:{sPm[1]+1}], s[{sTag}:{sTag+1}], v[{hML+6}:{hML+7}]")
    g(f"s_cmp_ge_u32 s{sCnt}, {hex(SPIN // 4)}")
    g("s_cbranch_scc1 L_gotml")
    g(f"s_or_b64 s[{sPm[0]}:{sPm[0]+1}], s[{sPm[0]}:{sPm[0]+1}], s[{sPm[1]}:{sPm[1]+1}]")
    g("s_cbranch_scc1 L_pml")
    g.lab("L_gotml")
    stamp(1)
    def allred_pl(op, r, t):
        g("s_nop 1")
        g(f"{op}_dpp v{r}, v{r}, v{r} row_ror:4 row_mask:0xf bank_mask:0xf")
        g("s_nop 1")
        g(f"{op}_dpp v{r}, v{r}, v{r} row_ror:8 row_mask:0xf bank_mask:0xf")
        g(f"v_mov_b32 v{t}, v{r}")
        g("s_nop 1")
        g(f"v_permlane16_swap_b32 v{r}, v{t}")
        g(f"{op} v{r}, v{r}, v{t}")
        g(f"v_mov_b32 v{t}, v{r}")
        g("s_nop 1")
        g(f"v_permlane32_swap_b32 v{r}, v{t}")
        g(f"{op} v{r}, v{r}, v{t}")
    g(f"s_sub_u32 s{sT2}, 0x10000, s{sCL}")
    g(f"s_cmp_eq_u32 s{sT2}, 0")
    g(f"s_cselect_b32 s{sT0}, 0xff800000, {f32(SM2)}") if False else None
    g(f"s_mov_b32 s{sT0}, {f32(SM2)}")
    g(f"s_cmov_b32 s{sT0}, 0xff800000")
    g(f"v_max3_f32 v12, v{hML}, v{hML+4}, s{sT0}")
    allred_pl("v_max_f32", 12, 13)
    g(f"v_sub_f32 v14, v{hML}, v12")
    g(f"v_sub_f32 v15, v{hML+4}, v12")
    g(f"v_sub_f32 v18, s{sT0}, v12")
    g(f"v_sub_f32 v19, v{hG}, v12")
    g("v_exp_f32 v14, v14")
    g("v_exp_f32 v15, v15")
    g("v_exp_f32 v18, v18")
    g("v_exp_f32 v19, v19")
    g(f"v_cvt_f32_u32 v20, s{sT2}")
    g(f"v_mul_f32 v14, v14, v{hML+1}")
    g(f"v_fmac_f32 v14, v15, v{hML+5}")
    allred_pl("v_add_f32", 14, 13)
    g("v_fmac_f32 v14, v18, v20")
    g("v_rcp_f32 v14, v14")
    g(f"s_lshr_b32 s{sT1}, s{sJ}, 3")
    g("v_mul_f32 v19, v19, v14")
    g("v_mul_f32 v18, v18, v14")
    g("s_mov_b64 exec, 0xf")
    g(f"ds_write_b32 v{hLf}, v19 offset:{FLO}")
    g("s_mov_b64 exec, -1")
    g(f"v_readlane_b32 s{sT0}, v18, s{sT1}")
    g("s_nop 0")
    g(f"s_cmp_lg_u32 s{sT0}, 0")
    g("s_cbranch_scc1 L_slow")
    g.lab("L_slow_ret")
    if dry:
        g(f"s_mov_b32 s{sDry}, 1")
        g(f"s_mov_b32 s{sCnt}, {hex(SPIN)}")
        g(f"s_mov_b32 s{srdW+2}, 0")
        g("s_branch L_go")
    g.lab("L_real")
    g(f"s_mov_b32 s{srdW+2}, {hex(WS_BYTES)}")
    g(f"s_mov_b32 s{sDry}, 0")
    g(f"s_mov_b32 s{sCnt}, 0")
    g("s_waitcnt lgkmcnt(0)")
    g("s_barrier")
    stamp(2)
    if d0:
        g(f"s_sleep {d0}")
    g.lab("L_go")
    for i in range(4):
        g(f"s_mov_b64 s[{sPm[i]}:{sPm[i]+1}], -1")
    g.lab("L_poll")
    for i in range(4):
        g(f"s_mov_b64 exec, s[{sPm[i]}:{sPm[i]+1}]")
        g(f"s_cbranch_execz L_sk{i}")
        g(f"buffer_load_dwordx4 v[{hO+4*i}:{hO+4*i+3}], v{hOffO}, s[{srdW}:{srdW+3}], s{sO[i]} offen sc1")
        g.lab(f"L_sk{i}")
    g("s_mov_b64 exec, -1")
    g(f"s_add_u32 s{sCnt}, s{sCnt}, 1")
    g("s_waitcnt vmcnt(0)")
    for i in range(4):
        g(f"v_cmp_ne_u64 s[{sPm[i]}:{sPm[i]+1}], s[{sTag}:{sTag+1}], v[{hO+4*i+2}:{hO+4*i+3}]")
    g(f"v_add_f32 v18, v{hO}, v{hO+4}")
    g(f"v_add_f32 v19, v{hO+1}, v{hO+5}")
    g(f"v_add_f32 v20, v{hO+8}, v{hO+12}")
    g(f"v_add_f32 v21, v{hO+9}, v{hO+13}")
    g(f"s_cmp_ge_u32 s{sCnt}, {hex(SPIN)}")
    g("s_cbranch_scc1 L_got")
    g(f"s_or_b64 s[{sPm[4]}:{sPm[4]+1}], s[{sPm[0]}:{sPm[0]+1}], s[{sPm[1]}:{sPm[1]+1}]")
    g(f"s_or_b64 s[{sPm[4]}:{sPm[4]+1}], s[{sPm[4]}:{sPm[4]+1}], s[{sPm[2]}:{sPm[2]+1}]")
    g(f"s_or_b64 s[{sPm[4]}:{sPm[4]+1}], s[{sPm[4]}:{sPm[4]+1}], s[{sPm[3]}:{sPm[3]+1}]")
    g("s_cbranch_scc1 L_poll")
    g.lab("L_got")
    stamp(3)
    g("v_add_f32 v18, v18, v16")
    g("v_add_f32 v19, v19, v17")
    g("v_add_f32 v18, v18, v20")
    g("v_add_f32 v19, v19, v21")
    g("s_nop 1")
    g("v_permlane32_swap_b32 v18, v19")
    g("v_add_f32 v18, v18, v19")
    g("v_mov_b32 v19, v18")
    g("s_nop 1")
    g("v_permlane16_swap_b32 v18, v19")
    g("v_add_f32 v18, v18, v19")
    g("s_nop 1")
    g("v_add_f32_dpp v18, v18, v18 row_ror:8 row_mask:0xf bank_mask:0xf")
    g("v_mov_b32 v19, v18")
    g("s_nop 1")
    g("v_permlane32_swap_b32 v18, v19")
    g("v_cvt_pk_bf16_f32 v18, v18, v19")
    if dry:
        g(f"s_cmp_eq_u32 s{sDry}, 1")
        g("s_cbranch_scc1 L_real")
    g("s_mov_b64 exec, 0xff")
    g(f"buffer_store_dword v18, v{hOffOut}, s[{srdO}:{srdO+3}], s{sOut} offen {op}")
    g(f"s_cmp_eq_u32 s{sJ}, 0")
    g("s_cbranch_scc0 L_hdone")
    g("s_mov_b64 exec, 1")
    g("v_mov_b32 v14, 0")
    g(f"global_store_dwordx2 v14, v[{hG+2}:{hG+3}], s[{sEp}:{sEp+1}] {op}")
    g.lab("L_hdone")
    if stamps:
        stamp(4)
        g(f"s_mov_b32 s{sSt+10}, s{sCnt}")
        dump_stamps(6, True)
    g("s_endpgm")

    sB, sPh, sTok = 80, 81, 82
    g.lab("L_slow")
    g(f"v_lshrrev_b32 v23, 3, v{vLane}")
    g(f"s_and_b32 s{sT1}, s{sJ}, 7")
    g(f"s_lshl_b32 s{sT1}, s{sT1}, 5")
    g(f"v_lshl_add_u32 v24, v23, 11, v{hOffOut}")
    g(f"v_add_u32 v24, s{sT1}, v24")
    g("v_add_u32 v25, 0x4000, v24")
    g("v_add_u32 v26, 8, v23")
    g(f"s_lshr_b32 s{sB}, s{sCL}, 4")
    g.lab("L_slow_loop")
    g(f"s_cmp_lt_u32 s{sB}, 0x1000")
    g("s_cbranch_scc0 L_slow_end")
    g(f"s_lshl_b32 s{sT1}, s{sB}, 2")
    g(f"s_load_dword s{sPh}, s[10:11], s{sT1}")
    g(f"s_lshl_b32 s{sTok}, s{sB}, 4")
    g(f"s_sub_i32 s{sTok}, s{sCL}, s{sTok}")
    g("s_waitcnt lgkmcnt(0)")
    g(f"s_lshl_b32 s{sPh}, s{sPh}, 15")
    g(f"buffer_load_dword v27, v24, s[{srdV}:{srdV+3}], s{sPh} offen")
    g(f"buffer_load_dword v28, v25, s[{srdV}:{srdV+3}], s{sPh} offen")
    g(f"v_cmp_le_i32 vcc, s{sTok}, v23")
    g(f"v_cmp_le_i32 s[84:85], s{sTok}, v26")
    g("s_waitcnt vmcnt(0)")
    g("v_cndmask_b32 v27, 0, v27, vcc")
    g("v_cndmask_b32 v28, 0, v28, s[84:85]")
    g("v_lshlrev_b32 v29, 16, v27")
    g("v_and_b32 v27, 0xffff0000, v27")
    g("v_add_f32 v16, v16, v29")
    g("v_add_f32 v17, v17, v27")
    g("v_lshlrev_b32 v29, 16, v28")
    g("v_and_b32 v28, 0xffff0000, v28")
    g("v_add_f32 v16, v16, v29")
    g("v_add_f32 v17, v17, v28")
    g(f"s_add_u32 s{sB}, s{sB}, 1")
    g("s_branch L_slow_loop")
    g.lab("L_slow_end")
    g(f"v_mul_f32 v16, s{sT0}, v16")
    g(f"v_mul_f32 v17, s{sT0}, v17")
    g("s_branch L_slow_ret")
    g.raw('.section .rodata,"a"')
    g.raw(".p2align 6")
    g.raw(kd(main, NV, 96))
    return g.text()

if __name__ == "__main__":
    import argparse
    ap = argparse.ArgumentParser()
    ap.add_argument("-o", default=f"cdna_kernels/{NAME}.s")
    ap.add_argument("--da", default="5656")
    ap.add_argument("--db", default="8888")
    ap.add_argument("--bmask", default="0x22")
    ap.add_argument("--stamps", action="store_true")
    ap.add_argument("--nodry", action="store_true")
    ap.add_argument("--d0", type=int, default=8)
    ap.add_argument("--mls", type=int, default=64)
    ap.add_argument("--diag", default="")
    ap.add_argument("--op", default="sc1")
    ap.add_argument("--enc", default=None)
    a = ap.parse_args()
    open(a.o, "w").write(gen(DA=tuple(map(int, a.da)), DB=tuple(map(int, a.db)), bmask=int(a.bmask, 16), stamps=a.stamps, dry=not a.nodry, d0=a.d0, diag=a.diag, mls=a.mls, op=a.op, enc=a.enc))
```

```python
import sys, struct, math

NAME = "standalone__paged_block_table_kv_pagedattention__decode"
KV_BYTES = 4100 * 32768
WS_BYTES = 537395200
ML_BASE = 1 << 20
EP_BASE = ML_BASE + 0x8000
STAMP_BASE = 2 << 20
INC_LO, INC_HI = 0x7F4A7C15, 0x9E3779B9
SPIN = 0x200000
LOG2E = math.log2(math.e)
SM2 = -998244352.0 * LOG2E

def f32(x):
    return "0x%08x" % struct.unpack("<I", struct.pack("<f", x))[0]

HEADER = """; Kernarg layout for this problem (64 bytes, ptrs only, base s[0:1]):
"""

class G:
    def __init__(s):
        s.L = []
    def __call__(s, t):
        s.L.append("    " + t)
    def lab(s, t):
        s.L.append(t + ":")
    def raw(s, t):
        s.L.append(t)
    def text(s):
        return "\n".join(s.L) + "\n"

def kd(name, vgpr, sgpr):
    acc = (vgpr + 3) // 4 * 4
    return f""".amdhsa_kernel {name}
  .amdhsa_next_free_vgpr {vgpr}
  .amdhsa_next_free_sgpr {sgpr}
  .amdhsa_accum_offset {acc}
  .amdhsa_group_segment_fixed_size 0
  .amdhsa_kernarg_size 64
  .amdhsa_user_sgpr_count 2
  .amdhsa_user_sgpr_kernarg_segment_ptr 1
  .amdhsa_system_sgpr_workgroup_id_x 1
.end_amdhsa_kernel
"""

def schedule(dist):
    issue = {p: [] for p in range(4)}
    for i in range(40, 44):
        c = i - dist[i % 4]
        issue[c % 4].append((i // 4 - c // 4, i % 4))
    t = [i - dist[i % 4] for i in range(80)]
    assert all(t[i] <= t[i + 1] for i in range(79)), "issue order must be monotone"
    for p in issue:
        issue[p].sort()
    wait = {}
    for p in range(4):
        c = 40 + p
        last = max(i for i in range(80) if t[i] < c)
        wait[p] = last - c
    npro = sum(1 for i in range(80) if t[i] < 0)
    assert all(1 <= du <= 2 for p in issue for du, _ in issue[p]) and max(dist) <= 8
    return issue, wait, npro

def gen(DA=(6,6,6,6), DB=(8,8,8,8), bmask=0x22, stamps=False, dry=True, d0=8, diag="", mls=64, op="sc1", enc=None):
    g = G()
    pol = " nt"
    LST = 7
    STRIDE_B = 128
    MAXB = 32
    MLO = 32768
    FLO = MLO + 128
    vK0, vK1, vV0, vV1 = 1, 2, 3, 4
    vMLw, vBT, vMLr = 5, 6, 7
    vQ = 8
    vA0, vA1 = 12, 16
    vM, vL, vSc, vTok = 20, 21, 22, 23
    vMsk0, vMsk1, vS, vSn = 24, 25, 26, 27
    vT0, vT1, vT2, vNEG = 28, 29, 30, 31
    vD = 32
    vI = {(1, 0): 48, (1, 1): 49, (2, 0): 50, (2, 1): 51}
    vP = 52
    vAw, vOr, vPo, vSa, vFr = 56, 57, 58, 59, 60
    vR = 64
    vX = 96
    NV = 104
    sW, sH, sJ, sU = 3, 36, 37, 38
    sS, sN, sRem, sT0, sT1, sT2 = 39, 40, 41, 42, 43, 44
    sCL = 45
    sOf = {1: 46, 2: 47}
    srdI = {1: 48, 2: 52}
    srdW = 56
    sPub = 62
    sKb, sVb = 26, 28
    sMk = {1: 30, 2: 32}
    sQm = [34, 60, 84]
    sE, sEp, sTag = 20, 22, 24
    sSt = 64
    def stamp(i):
        if stamps:
            g(f"s_memrealtime s[{sSt + 2*i}:{sSt + 2*i + 1}]")
    def dump_stamps(n, helper=False):
        if not stamps:
            return
        if enc is not None:
            g("s_waitcnt lgkmcnt(0)")
            lab = "L_enc" + ("H" if helper else "P")
            if enc[0] in "XY":
                if not helper:
                    return
                g(f"s_getreg_b32 s{sT1}, hwreg(HW_REG_XCC_ID)")
                g(f"s_and_b32 s{sT1}, s{sT1}, 7")
                g(f"s_cmp_eq_u32 s{sT1}, {int(enc[1:])}")
                g(f"s_cbranch_scc0 {lab}_e")
                if enc[0] == "X":
                    g(f"s_add_u32 s{sT0}, s{sSt}, 6000")
                else:
                    g(f"s_add_u32 s{sT0}, s{sSt+8}, 4000")
            elif (enc[0] == "H") == helper:
                g(f"s_add_u32 s{sT0}, s{sSt+2*int(enc[1:])}, 4000")
            else:
                return
            g.lab(lab)
            g("s_sleep 1")
            g(f"s_memrealtime s[{sSt+12}:{sSt+13}]")
            g("s_waitcnt lgkmcnt(0)")
            g(f"s_sub_u32 s{sT1}, s{sSt+12}, s{sT0}")
            g(f"s_cmp_lt_i32 s{sT1}, 0")
            g(f"s_cbranch_scc1 {lab}")
            g.lab(lab + "_e")
            return
        g("s_mov_b64 exec, 1")
        g("s_waitcnt lgkmcnt(0)")
        g(f"s_mul_i32 s{sT0}, s2, 5")
        g(f"s_add_u32 s{sT0}, s{sT0}, s{sW}")
        g(f"s_lshl_b32 s{sT0}, s{sT0}, 6")
        g(f"s_add_u32 s{sT0}, s{sT0}, {hex(STAMP_BASE)}")
        g("v_mov_b32 v5, 0")
        for i in range(n):
            g(f"v_mov_b32 v{32+i}, s{sSt+2*i}")
        g(f"s_getreg_b32 s{sT1}, hwreg(HW_REG_XCC_ID)")
        g(f"v_mov_b32 v{32+6}, s{sT1}")
        g(f"s_getreg_b32 s{sT1}, hwreg(HW_REG_HW_ID)")
        g(f"v_mov_b32 v{32+7}, s{sT1}")
        g(f"buffer_store_dwordx4 v[32:35], v5, s[{srdW}:{srdW+3}], s{sT0} offen")
        g(f"buffer_store_dwordx4 v[36:39], v5, s[{srdW}:{srdW+3}], s{sT0} offen offset:16")
    def ws_srd():
        g(f"s_mov_b32 s{srdW}, s18")
        g(f"s_mov_b32 s{srdW+1}, s19")
        g(f"s_mov_b32 s{srdW+2}, {hex(WS_BYTES)}")
        g(f"s_mov_b32 s{srdW+3}, 0x20000")
    def epoch_load():
        g(f"s_lshl_b32 s{sEp}, s{sH}, 7")
        g(f"s_add_u32 s{sEp}, s{sEp}, {hex(EP_BASE)}")
        g(f"s_add_u32 s{sEp}, s18, s{sEp}")
        g(f"s_addc_u32 s{sEp+1}, s19, 0")
        g(f"s_load_dwordx2 s[{sE}:{sE+1}], s[{sEp}:{sEp+1}], 0")
    def make_tag():
        g(f"s_add_u32 s{sTag}, s{sE}, {hex(INC_LO)}")
        g(f"s_addc_u32 s{sTag+1}, s{sE+1}, {hex(INC_HI)}")
    def clamp_cl():
        g(f"s_max_i32 s{sCL}, s{sCL}, 0")
        g(f"s_min_i32 s{sCL}, s{sCL}, 0x10000")
    def ld(half, pos, vo, srd, so):
        r = vR + 16 * half + 4 * pos
        off = " offset:2048" if (pos & 1) else ""
        g(f"buffer_load_dwordx4 v[{r}:{r+3}], v{vo}, s[{srd}:{srd+3}], s{so} offen{off}{pol}")

    schA, schB = schedule(DA), schedule(DB)
    two = DA != DB
    assert schA[2] <= schB[2]
    main = NAME + "_kernel"
    g.raw(HEADER.rstrip("\n"))
    g.raw(f"; @launch grid=(256,1,1) block=(320,1,1) lds={FLO+128}")
    g.raw('.amdgcn_target "amdgcn-amd-amdhsa--gfx950"')
    g.raw(".text")
    g.raw(f".globl {main}")
    g.raw(".p2align 8")
    g.raw(f".type {main},@function")
    g.lab(main)
    g("s_load_dwordx16 s[4:19], s[0:1], 0")
    stamp(0)
    g(f"v_readfirstlane_b32 s{sW}, v0")
    g("s_cmp_ge_u32 s2, 0x100")
    g("s_cbranch_scc1 L_end")
    g(f"v_and_b32 v{vT2}, 63, v0")
    g(f"s_bfe_u32 s{sH}, s2, 0x30003")
    g(f"s_and_b32 s{sJ}, s2, 7")
    g(f"s_lshr_b32 s{sT0}, s2, 6")
    g(f"s_lshr_b32 s{sW}, s{sW}, 6")
    g(f"s_lshl3_add_u32 s{sJ}, s{sT0}, s{sJ}")
    g(f"s_lshl_b32 s{sT1}, s{sH}, 8")
    g(f"s_cmp_eq_u32 s{sW}, 4")
    g("s_cbranch_scc1 L_helper")
    g(f"s_lshl_b32 s{sU}, s{sW}, 5")
    g(f"s_add_u32 s{sU}, s{sU}, s{sJ}")
    g(f"s_lshl_b32 s{sT0}, s{sU}, 2")
    g(f"v_lshrrev_b32 v{vX}, 4, v{vT2}")
    g(f"v_and_b32 v{vX+1}, 3, v{vT2}")
    g(f"v_lshlrev_b32 v{vX+2}, 4, v{vX+1}")
    g(f"v_lshl_add_u32 v{vX+2}, v{vX}, 6, v{vX+2}")
    g(f"v_bfe_u32 v{vX+3}, v{vT2}, 2, 2")
    g(f"v_lshl_add_u32 v{vK0}, v{vX+3}, 13, v{vX+2}")
    g(f"v_add_u32 v{vK1}, 0x1000, v{vK0}")
    g(f"v_lshl_add_u32 v{vT1}, v{vX+3}, 8, v{vX+2}")
    g(f"v_and_b32 v{vT0}, {MAXB-1}, v{vT2}")
    g(f"v_lshlrev_b32 v{vT0}, {LST+2}, v{vT0}")
    g(f"s_sub_u32 s{srdI[2]+2}, {hex(KV_BYTES)}, s{sT1}")
    g(f"s_mov_b32 s{srdI[2]+3}, 0x20000")
    g("s_waitcnt lgkmcnt(0)")
    g(f"s_add_u32 s10, s10, s{sT0}")
    g("s_addc_u32 s11, s11, 0")
    g(f"s_load_dword s{sOf[1]}, s[10:11], 0")
    g(f"s_load_dword s{sOf[2]}, s[10:11], {STRIDE_B*4}")
    g(f"s_load_dword s{sCL}, s[12:13], 0")
    g(f"s_lshl2_add_u32 s4, s{sT1}, s4")
    g("s_addc_u32 s5, s5, 0")
    g(f"global_load_dword v{vBT}, v{vT0}, s[10:11]")
    g(f"global_load_dwordx4 v[{vQ}:{vQ+3}], v{vT1}, s[4:5]")
    g(f"s_add_u32 s{srdI[2]}, s6, s{sT1}")
    g(f"s_addc_u32 s{srdI[2]+1}, s7, 0")
    g("s_waitcnt lgkmcnt(0)")
    g(f"s_lshl_b32 s{sOf[1]}, s{sOf[1]}, 15")
    g(f"s_lshl_b32 s{sOf[2]}, s{sOf[2]}, 15")
    def pro(i):
        ld(i // 4, i % 4, vK0 if (i & 2) == 0 else vK1, srdI[2], sOf[1 + i // 4])
    for i in range(schA[2]):
        pro(i)
    stamp(1)
    if two and schB[2] > schA[2]:
        g(f"s_bitcmp1_b32 {hex(bmask)}, s{sH}")
        g("s_cbranch_scc0 L_noextra")
        for i in range(schA[2], schB[2]):
            pro(i)
        g.lab("L_noextra")
    epoch_load()
    g(f"s_mov_b64 s[{sKb}:{sKb+1}], s[{srdI[2]}:{srdI[2]+1}]")
    g(f"s_add_u32 s{sVb}, s8, s{sT1}")
    g(f"s_addc_u32 s{sVb+1}, s9, 0")
    g(f"s_mov_b32 s{srdI[1]+2}, s{srdI[2]+2}")
    g(f"s_mov_b32 s{srdI[1]+3}, 0x20000")
    g(f"s_mov_b64 s[{sMk[2]}:{sMk[2]+1}], 0")
    ws_srd()
    g(f"v_and_b32 v{vX+4}, 15, v{vT2}")
    g(f"v_lshlrev_b32 v{vX+4}, 4, v{vX+4}")
    g(f"v_lshl_add_u32 v{vV0}, v{vX}, 13, v{vX+4}")
    g(f"v_add_u32 v{vV1}, 0x1000, v{vV0}")
    g(f"v_lshl_add_u32 v{vPo}, v{vX}, 10, v{vX+4}")
    g(f"s_lshl_b32 s{sPub}, s{sH}, 5")
    g(f"s_add_u32 s{sPub}, s{sPub}, s{sJ}")
    g(f"s_lshl_b32 s{sPub}, s{sPub}, 4")
    g(f"s_add_u32 s{sPub}, s{sPub}, s{sW}")
    g(f"s_lshl_b32 s{sPub}, s{sPub}, 8")
    g(f"s_lshl_b32 s{sT0}, s{sW}, 13")
    g(f"v_lshl_add_u32 v{vAw}, v{vT2}, 4, s{sT0}")
    g(f"v_lshl_add_u32 v{vSa}, v{vT2}, 2, s{sT0}")
    g(f"v_lshlrev_b32 v{vOr}, 4, v{vX+3}")
    g(f"v_lshl_add_u32 v{vOr}, v{vX}, 8, v{vOr}")
    g(f"v_bfe_u32 v{vX+5}, v{vT2}, 1, 1")
    g(f"v_lshl_add_u32 v{vOr}, v{vX+5}, 10, v{vOr}")
    g(f"v_and_b32 v{vX+5}, 1, v{vT2}")
    g(f"v_lshl_add_u32 v{vOr}, v{vX+5}, 3, v{vOr}")
    g(f"s_lshl_b32 s{sT0}, s{sW}, 6")
    g(f"v_add_u32 v{vOr}, s{sT0}, v{vOr}")
    g(f"v_lshlrev_b32 v{vFr}, 2, v{vX}")
    g(f"v_lshlrev_b32 v{vMLr}, 5, v{vX+3}")
    g(f"s_lshl_b32 s{sT0}, s{sW}, 3")
    g(f"v_add_u32 v{vMLw}, s{sT0}, v{vMLr}")
    g(f"v_lshl_add_u32 v{vTok}, v{vX}, 2, v{vX+1}")
    g(f"v_mov_b32 v{vSc}, {f32(128 ** -0.5 * LOG2E)}")
    g(f"v_mov_b32 v{vNEG}, 0xff800000")
    g(f"v_mov_b32 v{vM}, {f32(-1e30)}")
    g(f"v_mov_b32 v{vL}, 0")
    for r in range(8):
        g(f"v_mov_b32 v{vA0+r}, 0")
    for x in range(3):
        m32 = hex(0x11111111 << (x + 1))
        g(f"s_mov_b32 s{sQm[x]}, {m32}")
        g(f"s_mov_b32 s{sQm[x]+1}, {m32}")
    g(f"v_lshlrev_b32 v{vX+5}, 4, v{vX+5}")
    g(f"v_mov_b32 v{vX+6}, 0xffff")
    g(f"v_lshlrev_b32 v{vX+6}, v{vX+5}, v{vX+6}")
    g(f"v_cmp_gt_u32 vcc, 2, v{vX+1}")
    g(f"v_bfrev_b32 v{vX+5}, 1")
    g(f"s_mov_b32 s{sS}, 0")
    g(f"v_cndmask_b32 v{vMsk0}, 0, v{vX+6}, vcc")
    g(f"v_xor_b32 v{vMsk1}, v{vMsk0}, v{vX+6}")
    clamp_cl()
    g(f"s_add_u32 s{sN}, s{sCL}, 15")
    g(f"s_lshr_b32 s{sN}, s{sN}, 4")
    g(f"s_add_u32 s{sN}, s{sN}, {STRIDE_B-1}")
    g(f"s_sub_u32 s{sN}, s{sN}, s{sU}")
    g(f"s_lshr_b32 s{sN}, s{sN}, {LST}")
    g(f"s_max_u32 s{sN}, s{sN}, 2")
    g(f"s_lshl_b32 s{sT0}, s{sU}, 4")
    g(f"s_sub_i32 s{sRem}, s{sCL}, s{sT0}")
    g(f"v_cmp_gt_u32 vcc, s{sN}, v{vT2}")
    g(f"s_waitcnt vmcnt({schA[2]+1})")
    g(f"v_lshlrev_b32 v{vBT}, 15, v{vBT}")
    g(f"v_cndmask_b32 v{vBT}, v{vX+5}, v{vBT}, vcc")
    if two:
        g(f"s_bitcmp1_b32 {hex(bmask)}, s{sH}")
        g("s_cbranch_scc1 L_k0B")

    D = lambda m, r=0: vD + 4 * m + r
    def phases(sch, sfx):
        issue, wait, _ = sch
        used = sorted({(du, pos >> 1) for p in issue for du, pos in issue[p]})
        dus = sorted({du for du, _ in used})
        for half in (0, 1):
            g.lab(f"L_k{half}{sfx}")
            g(f"s_add_u32 s{sT0}, s{sS}, 2")
            g(f"s_mov_b32 s{sOf[1]}, s{sOf[2]}")
            if 1 in dus:
                g(f"s_mov_b64 s[{srdI[1]}:{srdI[1]+1}], s[{srdI[2]}:{srdI[2]+1}]")
                g(f"s_mov_b64 s[{sMk[1]}:{sMk[1]+1}], s[{sMk[2]}:{sMk[2]+1}]")
            g(f"s_cmp_ge_u32 s{sT0}, s{sN}")
            g(f"s_cselect_b32 s{sT1}, s{sN}, 0")
            g(f"s_cselect_b64 s[{srdI[2]}:{srdI[2]+1}], s[{sVb}:{sVb+1}], s[{sKb}:{sKb+1}]")
            g(f"s_cselect_b64 s[{sMk[2]}:{sMk[2]+1}], -1, 0")
            g(f"s_sub_u32 s{sT0}, s{sT0}, s{sT1}")
            g(f"v_readlane_b32 s{sOf[2]}, v{vBT}, s{sT0}")
            for du, o in used:
                g(f"v_cndmask_b32 v{vI[(du, o)]}, v{vK0 + o}, v{vV0 + o}, s[{sMk[du]}:{sMk[du]+1}]")
            g(f"v_cmp_gt_i32 vcc, s{sRem}, v{vTok}")
            g(f"s_add_u32 s{sS}, s{sS}, 1")
            g(f"s_sub_i32 s{sRem}, s{sRem}, {hex(16*STRIDE_B)}")
            for p in range(4):
                r = vR + 16 * half + 4 * p
                g(f"s_waitcnt vmcnt({wait[p]})")
                g(f"v_mfma_f32_16x16x32_bf16 v[{D(p)}:{D(p,3)}], v[{r}:{r+3}], v[{vQ}:{vQ+3}], 0")
                for du, pos in issue[p]:
                    ld((half + du) & 1, pos, vI[(du, pos >> 1)], srdI[du], sOf[du])
            g(f"s_nop {4 - len(issue[3])}")
            for r in range(4):
                for m in range(4):
                    op = "v_mul_f32_dpp" if r == 0 else "v_fmac_f32_dpp"
                    g(f"{op} v{D(m)}, v{D(m,r)}, v{vSc} quad_perm:[{r},{r},{r},{r}] row_mask:0xf bank_mask:0xf")
            g(f"v_cndmask_b32 v{vS}, v{D(0)}, v{D(1)}, s[{sQm[0]}:{sQm[0]+1}]")
            g(f"v_cndmask_b32 v{vS}, v{vS}, v{D(2)}, s[{sQm[1]}:{sQm[1]+1}]")
            g(f"v_cndmask_b32 v{vS}, v{vS}, v{D(3)}, s[{sQm[2]}:{sQm[2]+1}]")
            g(f"v_cndmask_b32 v{vS}, v{vNEG}, v{vS}, vcc")
            g(f"ds_write_b32 v{vSa}, v{vS}")
            g(f"v_max_f32 v{vT0}, v{vM}, v{vS}")
            g(f"v_sub_f32 v{vT1}, v{vM}, v{vT0}")
            g(f"v_sub_f32 v{vT2}, v{vS}, v{vT0}")
            g(f"v_exp_f32 v{vT1}, v{vT1}")
            g(f"v_exp_f32 v{vT2}, v{vT2}")
            g(f"v_mov_b32 v{vM}, v{vT0}")
            g(f"v_add_u32 v{vSa}, 0x100, v{vSa}")
            g(f"v_fma_f32 v{vL}, v{vL}, v{vT1}, v{vT2}")
            g(f"s_cmp_lt_u32 s{sS}, s{sN}")
            if half == 0:
                g(f"s_cbranch_scc0 L_mid{sfx}")
            else:
                g(f"s_cbranch_scc1 L_k0{sfx}")
        g.lab(f"L_mid{sfx}")
        def allred(op, r, t):
            g(f"{op}_dpp v{r}, v{r}, v{r} quad_perm:[1,0,3,2] row_mask:0xf bank_mask:0xf")
            g("s_nop 1")
            g(f"{op}_dpp v{r}, v{r}, v{r} quad_perm:[2,3,0,1] row_mask:0xf bank_mask:0xf")
            g(f"v_mov_b32 v{t}, v{r}")
            g("s_nop 1")
            g(f"v_permlane16_swap_b32 v{r}, v{t}")
            g(f"{op} v{r}, v{r}, v{t}")
            g(f"v_mov_b32 v{t}, v{r}")
            g("s_nop 1")
            g(f"v_permlane32_swap_b32 v{r}, v{t}")
            g(f"{op} v{r}, v{r}, v{t}")
        stamp(5)
        g(f"s_lshl_b32 s{sT0}, s{sN}, 8")
        g(f"v_subrev_u32 v{vSa}, s{sT0}, v{vSa}")
        allred("v_max_f32", vM, vT1)
        g(f"v_sub_f32 v{vT0}, v{vT0}, v{vM}")
        g(f"v_exp_f32 v{vT0}, v{vT0}")
        g(f"ds_read_b32 v{vSn}, v{vSa}")
        g(f"v_mul_f32 v{vL}, v{vL}, v{vT0}")
        g("s_nop 1")
        allred("v_add_f32", vL, vT1)
        g("s_mov_b64 exec, 0x1111")
        g(f"ds_write_b64 v{vMLw}, v[{vM}:{vL}] offset:{MLO}")
        g("s_mov_b64 exec, -1")
        g("s_waitcnt lgkmcnt(0)")
        g("s_barrier")
        g(f"ds_read_b128 v[{vX}:{vX+3}], v{vMLr} offset:{MLO}")
        g(f"ds_read_b128 v[{vX+4}:{vX+7}], v{vMLr} offset:{MLO+16}")
        make_tag()
        g(f"v_mov_b32 v{vP+2}, s{sTag}")
        g(f"v_mov_b32 v{vP+3}, s{sTag+1}")
        g(f"s_mov_b32 s{sS}, 0")
        g("s_waitcnt lgkmcnt(0)")
        g(f"v_max3_f32 v{vM}, v{vX}, v{vX+2}, v{vX+4}")
        g(f"v_max_f32 v{vM}, v{vM}, v{vX+6}")
        g(f"s_bitcmp1_b32 s{sN}, 0")
        g(f"s_cbranch_scc1 L_v1{sfx}")
        for half in (0, 1):
            g.lab(f"L_v{half}{sfx}")
            g(f"s_add_u32 s{sT0}, s{sS}, 2")
            g(f"s_mov_b32 s{sOf[1]}, s{sOf[2]}")
            g(f"v_readlane_b32 s{sOf[2]}, v{vBT}, s{sT0}")
            g("s_waitcnt lgkmcnt(0)")
            g(f"v_sub_f32 v{vS}, v{vSn}, v{vM}")
            g(f"v_exp_f32 v{vS}, v{vS}")
            g(f"ds_read_b32 v{vSn}, v{vSa} offset:256")
            g(f"v_cvt_pk_bf16_f32 v{vS}, v{vS}, v{vS}")
            g(f"v_add_u32 v{vSa}, 0x100, v{vSa}")
            g(f"s_add_u32 s{sS}, s{sS}, 1")
            for m in range(4):
                g(f"v_and_b32_dpp v{D(m)}, v{vS}, v{vMsk0} quad_perm:[{m},{m},{m},{m}] row_mask:0xf bank_mask:0xf")
                g(f"v_and_b32_dpp v{D(m,1)}, v{vS}, v{vMsk1} quad_perm:[{m},{m},{m},{m}] row_mask:0xf bank_mask:0xf")
            g(f"s_cmp_lt_u32 s{sS}, s{sN}")
            for p in range(4):
                r = vR + 16 * half + 4 * p
                g(f"s_waitcnt vmcnt({wait[p]})")
                g(f"v_mfma_f32_16x16x16_bf16 v[{vA0}:{vA0+3}], v[{D(p)}:{D(p,1)}], v[{r}:{r+1}], v[{vA0}:{vA0+3}]")
                g(f"v_mfma_f32_16x16x16_bf16 v[{vA1}:{vA1+3}], v[{D(p)}:{D(p,1)}], v[{r+2}:{r+3}], v[{vA1}:{vA1+3}]")
                if p == 3:
                    g("s_cbranch_scc0 L_fin")
                for du, pos in issue[p]:
                    ld((half + du) & 1, pos, vV0 + (pos >> 1), srdI[2], sOf[du])
            if half == 1:
                g(f"s_branch L_v0{sfx}")

    if two:
        phases(schA, "A")
        phases(schB, "B")
    else:
        phases(schA, "A")

    g.lab("L_fin")
    g("s_nop 6")
    stamp(3)
    g(f"ds_write_b128 v{vAw}, v[{vA0}:{vA0+3}]")
    g(f"ds_write_b128 v{vAw}, v[{vA1}:{vA1+3}] offset:1024")
    g("s_waitcnt lgkmcnt(0)")
    g("s_barrier")
    for w in range(4):
        g(f"ds_read_b64 v[{vX+2*w}:{vX+2*w+1}], v{vOr} offset:{8192*w}")
    g(f"ds_read_b32 v{vT0}, v{vFr} offset:{FLO}")
    g("s_waitcnt lgkmcnt(3)")
    g(f"v_add_f32 v{vX}, v{vX}, v{vX+2}")
    g(f"v_add_f32 v{vX+1}, v{vX+1}, v{vX+3}")
    g("s_waitcnt lgkmcnt(1)")
    g(f"v_add_f32 v{vX+4}, v{vX+4}, v{vX+6}")
    g(f"v_add_f32 v{vX+5}, v{vX+5}, v{vX+7}")
    g(f"v_add_f32 v{vX}, v{vX}, v{vX+4}")
    g(f"v_add_f32 v{vX+1}, v{vX+1}, v{vX+5}")
    g("s_waitcnt lgkmcnt(0)")
    g(f"v_mul_f32 v{vP}, v{vX}, v{vT0}")
    g(f"v_mul_f32 v{vP+1}, v{vX+1}, v{vT0}")
    if "nopub" not in diag:
        g(f"buffer_store_dwordx4 v[{vP}:{vP+3}], v{vPo}, s[{srdW}:{srdW+3}], s{sPub} offen sc1")
    if stamps:
        stamp(2)
        g("s_waitcnt vmcnt(0)")
        stamp(4)
        dump_stamps(6)
    g.lab("L_end")
    g("s_endpgm")

    vLane = vT2
    hO = 64
    hML = 32
    hG = 40
    hOffO, hOffML, hOffOut, hLf, hLml, hOffPub = 1, 2, 3, 4, 6, 7
    srdO, srdV = 48, 52
    sMLr, sMLw, sOut, sDry, sCnt = 39, 40, 41, 62, 63
    sO = [46, 47, 60, 61]
    sPm = [26, 28, 30, 32, 34]
    g.raw(".p2align 6")
    g.lab("L_helper")
    g(f"v_lshrrev_b32 v12, 3, v{vLane}")
    g(f"v_and_b32 v13, 7, v{vLane}")
    g(f"v_lshlrev_b32 v{hOffPub}, 4, v13")
    g(f"v_lshl_add_u32 v{hOffO}, v12, 14, v{hOffPub}")
    g(f"v_lshlrev_b32 v{hOffOut}, 2, v13")
    g(f"v_and_b32 v14, 3, v{vLane}")
    g(f"v_lshlrev_b32 v{hLml}, 5, v14")
    g(f"v_lshlrev_b32 v{hLf}, 2, v14")
    g(f"v_lshrrev_b32 v15, 2, v{vLane}")
    g(f"v_lshlrev_b32 v14, 4, v14")
    g(f"v_lshl_add_u32 v{hOffML}, v15, 7, v14")
    g("v_mov_b32 v16, 0")
    g("v_mov_b32 v17, 0")
    g("s_waitcnt lgkmcnt(0)")
    epoch_load()
    g(f"s_load_dword s{sCL}, s[12:13], 0")
    ws_srd()
    g(f"s_add_u32 s{srdV}, s8, s{sT1}")
    g(f"s_addc_u32 s{srdV+1}, s9, 0")
    g(f"s_sub_u32 s{srdV+2}, {hex(KV_BYTES)}, s{sT1}")
    g(f"s_mov_b32 s{srdV+3}, 0x20000")
    g(f"s_mov_b32 s{srdO}, s14")
    g(f"s_mov_b32 s{srdO+1}, s15")
    g(f"s_mov_b32 s{srdO+2}, 0x2000")
    g(f"s_mov_b32 s{srdO+3}, 0x20000")
    g(f"s_lshl_b32 s{sT1}, s{sH}, 17")
    g(f"s_lshl_b32 s{sT2}, s{sJ}, 7")
    g(f"s_add_u32 s{sO[0]}, s{sT1}, s{sT2}")
    for i in range(1, 4):
        g(f"s_add_u32 s{sO[i]}, s{sO[0]}, {hex(4096*i)}")
    g(f"s_lshl_b32 s{sMLr}, s{sH}, 12")
    g(f"s_add_u32 s{sMLr}, s{sMLr}, {hex(ML_BASE)}")
    g(f"s_add_u32 s{sMLw}, s{sMLr}, s{sT2}")
    g(f"s_lshl_b32 s{sOut}, s{sH}, 10")
    g(f"s_lshl_b32 s{sT0}, s{sJ}, 5")
    g(f"s_add_u32 s{sOut}, s{sOut}, s{sT0}")
    g("s_waitcnt lgkmcnt(0)")
    make_tag()
    clamp_cl()
    g(f"v_mov_b32 v{hG+2}, s{sTag}")
    g(f"v_mov_b32 v{hG+3}, s{sTag+1}")
    if "nohelp" in diag:
        g("s_barrier")
        g("s_barrier")
        for i in range(1, 6):
            stamp(i)
        dump_stamps(6)
        g("s_endpgm")
    g("s_barrier")
    g(f"ds_read_b128 v[20:23], v{hLml} offset:{MLO}")
    g(f"ds_read_b128 v[24:27], v{hLml} offset:{MLO+16}")
    g("s_waitcnt lgkmcnt(0)")
    g(f"v_max3_f32 v12, v20, v22, v24")
    g(f"v_max_f32 v{hG}, v12, v26")
    for w in range(4):
        g(f"v_sub_f32 v{20+2*w}, v{20+2*w}, v{hG}")
    for w in range(4):
        g(f"v_exp_f32 v{20+2*w}, v{20+2*w}")
    g(f"v_mul_f32 v{hG+1}, v20, v21")
    for w in range(1, 4):
        g(f"v_fmac_f32 v{hG+1}, v{20+2*w}, v{21+2*w}")
    g("s_mov_b64 exec, 0xff")
    g(f"buffer_store_dwordx4 v[{hG}:{hG+3}], v{hOffPub}, s[{srdW}:{srdW+3}], s{sMLw} offen sc1")
    g("s_mov_b64 exec, -1")
    g(f"s_mov_b32 s{sCnt}, 0")
    g.lab("L_pml")
    g(f"s_sleep {mls}")
    g(f"buffer_load_dwordx4 v[{hML}:{hML+3}], v{hOffML}, s[{srdW}:{srdW+3}], s{sMLr} offen sc1")
    g(f"buffer_load_dwordx4 v[{hML+4}:{hML+7}], v{hOffML}, s[{srdW}:{srdW+3}], s{sMLr} offen offset:2048 sc1")
    g(f"s_add_u32 s{sCnt}, s{sCnt}, 1")
    g("s_waitcnt vmcnt(0)")
    g(f"v_cmp_ne_u64 s[{sPm[0]}:{sPm[0]+1}], s[{sTag}:{sTag+1}], v[{hML+2}:{hML+3}]")
    g(f"v_cmp_ne_u64 s[{sPm[1]}:{sPm[1]+1}], s[{sTag}:{sTag+1}], v[{hML+6}:{hML+7}]")
    g(f"s_cmp_ge_u32 s{sCnt}, {hex(SPIN // 4)}")
    g("s_cbranch_scc1 L_gotml")
    g(f"s_or_b64 s[{sPm[0]}:{sPm[0]+1}], s[{sPm[0]}:{sPm[0]+1}], s[{sPm[1]}:{sPm[1]+1}]")
    g("s_cbranch_scc1 L_pml")
    g.lab("L_gotml")
    stamp(1)
    def allred_pl(op, r, t):
        g("s_nop 1")
        g(f"{op}_dpp v{r}, v{r}, v{r} row_ror:4 row_mask:0xf bank_mask:0xf")
        g("s_nop 1")
        g(f"{op}_dpp v{r}, v{r}, v{r} row_ror:8 row_mask:0xf bank_mask:0xf")
        g(f"v_mov_b32 v{t}, v{r}")
        g("s_nop 1")
        g(f"v_permlane16_swap_b32 v{r}, v{t}")
        g(f"{op} v{r}, v{r}, v{t}")
        g(f"v_mov_b32 v{t}, v{r}")
        g("s_nop 1")
        g(f"v_permlane32_swap_b32 v{r}, v{t}")
        g(f"{op} v{r}, v{r}, v{t}")
    g(f"s_sub_u32 s{sT2}, 0x10000, s{sCL}")
    g(f"s_cmp_eq_u32 s{sT2}, 0")
    g(f"s_cselect_b32 s{sT0}, 0xff800000, {f32(SM2)}") if False else None
    g(f"s_mov_b32 s{sT0}, {f32(SM2)}")
    g(f"s_cmov_b32 s{sT0}, 0xff800000")
    g(f"v_max3_f32 v12, v{hML}, v{hML+4}, s{sT0}")
    allred_pl("v_max_f32", 12, 13)
    g(f"v_sub_f32 v14, v{hML}, v12")
    g(f"v_sub_f32 v15, v{hML+4}, v12")
    g(f"v_sub_f32 v18, s{sT0}, v12")
    g(f"v_sub_f32 v19, v{hG}, v12")
    g("v_exp_f32 v14, v14")
    g("v_exp_f32 v15, v15")
    g("v_exp_f32 v18, v18")
    g("v_exp_f32 v19, v19")
    g(f"v_cvt_f32_u32 v20, s{sT2}")
    g(f"v_mul_f32 v14, v14, v{hML+1}")
    g(f"v_fmac_f32 v14, v15, v{hML+5}")
    allred_pl("v_add_f32", 14, 13)
    g("v_fmac_f32 v14, v18, v20")
    g("v_rcp_f32 v14, v14")
    g(f"s_lshr_b32 s{sT1}, s{sJ}, 3")
    g("v_mul_f32 v19, v19, v14")
    g("v_mul_f32 v18, v18, v14")
    g("s_mov_b64 exec, 0xf")
    g(f"ds_write_b32 v{hLf}, v19 offset:{FLO}")
    g("s_mov_b64 exec, -1")
    g(f"v_readlane_b32 s{sT0}, v18, s{sT1}")
    g("s_nop 0")
    g(f"s_cmp_lg_u32 s{sT0}, 0")
    g("s_cbranch_scc1 L_slow")
    g.lab("L_slow_ret")
    if dry:
        g(f"s_mov_b32 s{sDry}, 1")
        g(f"s_mov_b32 s{sCnt}, {hex(SPIN)}")
        g(f"s_mov_b32 s{srdW+2}, 0")
        g("s_branch L_go")
    g.lab("L_real")
    g(f"s_mov_b32 s{srdW+2}, {hex(WS_BYTES)}")
    g(f"s_mov_b32 s{sDry}, 0")
    g(f"s_mov_b32 s{sCnt}, 0")
    g("s_waitcnt lgkmcnt(0)")
    g("s_barrier")
    stamp(2)
    if d0:
        g(f"s_sleep {d0}")
    g.lab("L_go")
    for i in range(4):
        g(f"s_mov_b64 s[{sPm[i]}:{sPm[i]+1}], -1")
    g.lab("L_poll")
    for i in range(4):
        g(f"s_mov_b64 exec, s[{sPm[i]}:{sPm[i]+1}]")
        g(f"s_cbranch_execz L_sk{i}")
        g(f"buffer_load_dwordx4 v[{hO+4*i}:{hO+4*i+3}], v{hOffO}, s[{srdW}:{srdW+3}], s{sO[i]} offen sc1")
        g.lab(f"L_sk{i}")
    g("s_mov_b64 exec, -1")
    g(f"s_add_u32 s{sCnt}, s{sCnt}, 1")
    g("s_waitcnt vmcnt(0)")
    for i in range(4):
        g(f"v_cmp_ne_u64 s[{sPm[i]}:{sPm[i]+1}], s[{sTag}:{sTag+1}], v[{hO+4*i+2}:{hO+4*i+3}]")
    g(f"v_add_f32 v18, v{hO}, v{hO+4}")
    g(f"v_add_f32 v19, v{hO+1}, v{hO+5}")
    g(f"v_add_f32 v20, v{hO+8}, v{hO+12}")
    g(f"v_add_f32 v21, v{hO+9}, v{hO+13}")
    g(f"s_cmp_ge_u32 s{sCnt}, {hex(SPIN)}")
    g("s_cbranch_scc1 L_got")
    g(f"s_or_b64 s[{sPm[4]}:{sPm[4]+1}], s[{sPm[0]}:{sPm[0]+1}], s[{sPm[1]}:{sPm[1]+1}]")
    g(f"s_or_b64 s[{sPm[4]}:{sPm[4]+1}], s[{sPm[4]}:{sPm[4]+1}], s[{sPm[2]}:{sPm[2]+1}]")
    g(f"s_or_b64 s[{sPm[4]}:{sPm[4]+1}], s[{sPm[4]}:{sPm[4]+1}], s[{sPm[3]}:{sPm[3]+1}]")
    g("s_cbranch_scc1 L_poll")
    g.lab("L_got")
    stamp(3)
    g("v_add_f32 v18, v18, v16")
    g("v_add_f32 v19, v19, v17")
    g("v_add_f32 v18, v18, v20")
    g("v_add_f32 v19, v19, v21")
    g("s_nop 1")
    g("v_permlane32_swap_b32 v18, v19")
    g("v_add_f32 v18, v18, v19")
    g("v_mov_b32 v19, v18")
    g("s_nop 1")
    g("v_permlane16_swap_b32 v18, v19")
    g("v_add_f32 v18, v18, v19")
    g("s_nop 1")
    g("v_add_f32_dpp v18, v18, v18 row_ror:8 row_mask:0xf bank_mask:0xf")
    g("v_mov_b32 v19, v18")
    g("s_nop 1")
    g("v_permlane32_swap_b32 v18, v19")
    g("v_cvt_pk_bf16_f32 v18, v18, v19")
    if dry:
        g(f"s_cmp_eq_u32 s{sDry}, 1")
        g("s_cbranch_scc1 L_real")
    g("s_mov_b64 exec, 0xff")
    g(f"buffer_store_dword v18, v{hOffOut}, s[{srdO}:{srdO+3}], s{sOut} offen {op}")
    g(f"s_cmp_eq_u32 s{sJ}, 0")
    g("s_cbranch_scc0 L_hdone")
    g("s_mov_b64 exec, 1")
    g("v_mov_b32 v14, 0")
    g(f"global_store_dwordx2 v14, v[{hG+2}:{hG+3}], s[{sEp}:{sEp+1}] {op}")
    g.lab("L_hdone")
    if stamps:
        stamp(4)
        g(f"s_mov_b32 s{sSt+10}, s{sCnt}")
        dump_stamps(6, True)
    g("s_endpgm")

    sB, sPh, sTok = 80, 81, 82
    g.lab("L_slow")
    g(f"v_lshrrev_b32 v23, 3, v{vLane}")
    g(f"s_and_b32 s{sT1}, s{sJ}, 7")
    g(f"s_lshl_b32 s{sT1}, s{sT1}, 5")
    g(f"v_lshl_add_u32 v24, v23, 11, v{hOffOut}")
    g(f"v_add_u32 v24, s{sT1}, v24")
    g("v_add_u32 v25, 0x4000, v24")
    g("v_add_u32 v26, 8, v23")
    g(f"s_lshr_b32 s{sB}, s{sCL}, 4")
    g.lab("L_slow_loop")
    g(f"s_cmp_lt_u32 s{sB}, 0x1000")
    g("s_cbranch_scc0 L_slow_end")
    g(f"s_lshl_b32 s{sT1}, s{sB}, 2")
    g(f"s_load_dword s{sPh}, s[10:11], s{sT1}")
    g(f"s_lshl_b32 s{sTok}, s{sB}, 4")
    g(f"s_sub_i32 s{sTok}, s{sCL}, s{sTok}")
    g("s_waitcnt lgkmcnt(0)")
    g(f"s_lshl_b32 s{sPh}, s{sPh}, 15")
    g(f"buffer_load_dword v27, v24, s[{srdV}:{srdV+3}], s{sPh} offen")
    g(f"buffer_load_dword v28, v25, s[{srdV}:{srdV+3}], s{sPh} offen")
    g(f"v_cmp_le_i32 vcc, s{sTok}, v23")
    g(f"v_cmp_le_i32 s[84:85], s{sTok}, v26")
    g("s_waitcnt vmcnt(0)")
    g("v_cndmask_b32 v27, 0, v27, vcc")
    g("v_cndmask_b32 v28, 0, v28, s[84:85]")
    g("v_lshlrev_b32 v29, 16, v27")
    g("v_and_b32 v27, 0xffff0000, v27")
    g("v_add_f32 v16, v16, v29")
    g("v_add_f32 v17, v17, v27")
    g("v_lshlrev_b32 v29, 16, v28")
    g("v_and_b32 v28, 0xffff0000, v28")
    g("v_add_f32 v16, v16, v29")
    g("v_add_f32 v17, v17, v28")
    g(f"s_add_u32 s{sB}, s{sB}, 1")
    g("s_branch L_slow_loop")
    g.lab("L_slow_end")
    g(f"v_mul_f32 v16, s{sT0}, v16")
    g(f"v_mul_f32 v17, s{sT0}, v17")
    g("s_branch L_slow_ret")
    g.raw('.section .rodata,"a"')
    g.raw(".p2align 6")
    g.raw(kd(main, NV, 96))
    return g.text()

if __name__ == "__main__":
    import argparse
    ap = argparse.ArgumentParser()
    ap.add_argument("-o", default=f"cdna_kernels/{NAME}.s")
    ap.add_argument("--da", default="5656")
    ap.add_argument("--db", default="8888")
    ap.add_argument("--bmask", default="0x22")
    ap.add_argument("--stamps", action="store_true")
    ap.add_argument("--nodry", action="store_true")
    ap.add_argument("--d0", type=int, default=8)
    ap.add_argument("--mls", type=int, default=64)
    ap.add_argument("--diag", default="")
    ap.add_argument("--op", default="sc1")
    ap.add_argument("--enc", default=None)
    a = ap.parse_args()
    open(a.o, "w").write(gen(DA=tuple(map(int, a.da)), DB=tuple(map(int, a.db)), bmask=int(a.bmask, 16), stamps=a.stamps, dry=not a.nodry, d0=a.d0, diag=a.diag, mls=a.mls, op=a.op, enc=a.enc))
```

```python
import struct, math

NAME = "standalone__paged_block_table_kv_pagedattention__decode"
KV_BYTES = 4100 * 32768
WS_BYTES = 537395200
ML_BASE = 1 << 20
EP_BASE = ML_BASE + 0x8000
STAMP_BASE = 2 << 20
INC_LO, INC_HI = 0x7F4A7C15, 0x9E3779B9
SPIN = 0x200000
LOG2E = math.log2(math.e)
SM2 = -998244352.0 * LOG2E

def f32(x):
    return "0x%08x" % struct.unpack("<I", struct.pack("<f", x))[0]

HEADER = """; Kernarg layout for this problem (64 bytes, ptrs only, base s[0:1]):
"""

DOC = """; Split-KV decode attention in one launch.  256 workgroups = 8 kv heads x 32 slices of the context
;   middle   workgroup max; the helper trades {max, sum} with the other 31 workgroups of the head and
; Hand-offs are 16-byte granules {data, data, tag64}; tag = epoch word found in d_ws + constant, stored back at
"""

class G:
    def __init__(s):
        s.L = []
    def __call__(s, t, c=None):
        s.L.append("    " + t + (("" if c is None else " " * max(1, 62 - len(t)) + "; " + c)))
    def lab(s, t, c=None):
        s.L.append(t + ":" + ("" if c is None else "   ; " + c))
    def raw(s, t):
        s.L.append(t)
    def cm(s, t):
        s.L.append("    ; " + t)
    def text(s):
        return "\n".join(s.L) + "\n"

def kd(name, vgpr, sgpr):
    acc = (vgpr + 3) // 4 * 4
    return f""".amdhsa_kernel {name}
  .amdhsa_next_free_vgpr {vgpr}
  .amdhsa_next_free_sgpr {sgpr}
  .amdhsa_accum_offset {acc}
  .amdhsa_group_segment_fixed_size 0
  .amdhsa_kernarg_size 64
  .amdhsa_user_sgpr_count 2
  .amdhsa_user_sgpr_kernarg_segment_ptr 1
  .amdhsa_system_sgpr_workgroup_id_x 1
.end_amdhsa_kernel
"""

def schedule(dist):
    issue = {p: [] for p in range(4)}
    for i in range(40, 44):
        c = i - dist[i % 4]
        issue[c % 4].append((i // 4 - c // 4, i % 4))
    t = [i - dist[i % 4] for i in range(80)]
    assert all(t[i] <= t[i + 1] for i in range(79))
    for p in issue:
        issue[p].sort()
    wait = {p: max(i for i in range(80) if t[i] < 40 + p) - (40 + p) for p in range(4)}
    npro = sum(1 for i in range(80) if t[i] < 0)
    assert all(1 <= du <= 2 for p in issue for du, _ in issue[p]) and max(dist) <= 8
    return issue, wait, npro

def gen(DA=(5,6,5,6), DB=(8,8,8,8), bmask=0x22, hxor=3, rtab="00002203", mls=64, stamps=False):
    g = G()
    MLO = 32768
    FLO = MLO + 128
    LLO = FLO + 128
    CLO = LLO + 768
    LDS = CLO + 256
    vK0, vK1, vV0, vV1 = 1, 2, 3, 4
    vMLw, vBT, vMLr = 5, 6, 7
    vQ = 8
    vA0, vA1 = 12, 16
    vM, vL, vSc, vTok = 20, 21, 22, 23
    vMsk0, vMsk1, vS, vSn = 24, 25, 26, 27
    vT0, vT1, vT2, vNEG = 28, 29, 30, 31
    vD = 32
    vI = {(1, 0): 48, (1, 1): 49, (2, 0): 50, (2, 1): 51}
    vP = 52
    vAw, vOr, vPo, vSa, vFr = 56, 57, 58, 59, 60
    vCo, vCout, vCw = 61, 62, 63
    vR = 64
    vX = 96
    NV = 104
    sW, sH, sJ, sU = 3, 36, 37, 38
    sS, sN, sRem, sT0, sT1, sT2 = 39, 40, 41, 42, 43, 44
    sCL = 45
    sOf = {1: 46, 2: 47}
    srdI = {1: 48, 2: 52}
    srdW = 56
    sPub = 62
    sKb, sVb = 26, 28
    sMk = {1: 30, 2: 32}
    sQm = [34, 60, 76]
    sE, sEp, sTag = 20, 22, 24
    sSt = 80
    sSl, sOut, sCnt, sBo = 64, 63, 33, 65
    sO = [68, 69, 70, 71]
    srdO = 72
    sPm = [26, 28, 30, 34, 60]
    NS = 96 if stamps else 78
    def stamp(i):
        if stamps:
            g(f"s_memrealtime s[{sSt + 2*i}:{sSt + 2*i + 1}]")
    def dump_stamps():
        if not stamps:
            return
        g("s_mov_b64 exec, 1")
        g("s_waitcnt lgkmcnt(0)")
        g(f"s_and_b32 s{sT0}, s{sJ}, 7")
        g(f"s_lshl3_add_u32 s{sT0}, s{sH}, s{sT0}")
        g(f"s_lshr_b32 s{sT1}, s{sJ}, 3")
        g(f"s_lshl_b32 s{sT1}, s{sT1}, 6")
        g(f"s_add_u32 s{sT0}, s{sT0}, s{sT1}")
        g(f"s_mul_i32 s{sT0}, s{sT0}, 5")
        g(f"s_add_u32 s{sT0}, s{sT0}, s{sW}")
        g(f"s_lshl_b32 s{sT0}, s{sT0}, 6")
        g(f"s_add_u32 s{sT0}, s{sT0}, {hex(STAMP_BASE)}")
        g("v_mov_b32 v5, 0")
        for i in range(6):
            g(f"v_mov_b32 v{32+i}, s{sSt+2*i}")
        g(f"s_getreg_b32 s{sT1}, hwreg(HW_REG_XCC_ID)")
        g(f"v_mov_b32 v{32+6}, s{sT1}")
        g(f"s_getreg_b32 s{sT1}, hwreg(HW_REG_HW_ID)")
        g(f"v_mov_b32 v{32+7}, s{sT1}")
        g(f"buffer_store_dwordx4 v[32:35], v5, s[{srdW}:{srdW+3}], s{sT0} offen")
        g(f"buffer_store_dwordx4 v[36:39], v5, s[{srdW}:{srdW+3}], s{sT0} offen offset:16")
    def ws_srd():
        g(f"s_mov_b32 s{srdW}, s18", "descriptor of d_ws")
        g(f"s_mov_b32 s{srdW+1}, s19")
        g(f"s_mov_b32 s{srdW+2}, {hex(WS_BYTES)}")
        g(f"s_mov_b32 s{srdW+3}, 0x20000")
    def epoch_load():
        g(f"s_lshl_b32 s{sEp}, s{sH}, 7")
        g(f"s_add_u32 s{sEp}, s{sEp}, {hex(EP_BASE)}")
        g(f"s_add_u32 s{sEp}, s18, s{sEp}")
        g(f"s_addc_u32 s{sEp+1}, s19, 0")
        g(f"s_load_dwordx2 s[{sE}:{sE+1}], s[{sEp}:{sEp+1}], 0", "epoch word of this head")
    def make_tag():
        g(f"s_add_u32 s{sTag}, s{sE}, {hex(INC_LO)}", "this launch's tag")
        g(f"s_addc_u32 s{sTag+1}, s{sE+1}, {hex(INC_HI)}")
    def clamp_cl():
        g(f"s_max_i32 s{sCL}, s{sCL}, 0")
        g(f"s_min_i32 s{sCL}, s{sCL}, 0x10000")
    def ld(half, pos, vo, srd, so):
        r = vR + 16 * half + 4 * pos
        off = " offset:2048" if (pos & 1) else ""
        g(f"buffer_load_dwordx4 v[{r}:{r+3}], v{vo}, s[{srd}:{srd+3}], s{so} offen{off} nt")
    def swaps(op, r, t):
        g(f"v_mov_b32 v{t}, v{r}")
        g("s_nop 1")
        g(f"v_permlane16_swap_b32 v{r}, v{t}")
        g(f"{op} v{r}, v{r}, v{t}")
        g(f"v_mov_b32 v{t}, v{r}")
        g("s_nop 1")
        g(f"v_permlane32_swap_b32 v{r}, v{t}")
        g(f"{op} v{r}, v{r}, v{t}")

    schA, schB = schedule(DA), schedule(DB)
    assert schA[2] < schB[2] and schA[2] >= 4
    main = NAME + "_kernel"
    g.raw(HEADER.rstrip("\n"))
    g.raw(f"; @launch grid=(256,1,1) block=(320,1,1) lds={LDS}")
    g.raw(DOC.rstrip("\n"))
    g.raw('.amdgcn_target "amdgcn-amd-amdhsa--gfx950"')
    g.raw(".text")
    g.raw(f".globl {main}")
    g.raw(".p2align 8")
    g.raw(f".type {main},@function")
    g.lab(main)
    g("s_load_dwordx16 s[4:19], s[0:1], 0", "q k v table len out debug ws")
    stamp(0)
    g(f"v_readfirstlane_b32 s{sW}, v0")
    g("s_cmp_ge_u32 s2, 0x100")
    g("s_cbranch_scc1 L_end", "workgroups past the grid")
    g(f"v_and_b32 v{vT2}, 63, v0", "lane")
    g(f"s_and_b32 s{sH}, s2, 7")
    g(f"s_xor_b32 s{sH}, s{sH}, {hxor}", "kv head")
    g(f"s_lshr_b32 s{sJ}, s2, 3", "slice j")
    g(f"s_lshr_b32 s{sW}, s{sW}, 6", "wave")
    g(f"s_lshl_b32 s{sT1}, s{sH}, 8")
    g(f"s_cmp_eq_u32 s{sW}, 4")
    g("s_cbranch_scc1 L_helper")
    g(f"s_lshl_b32 s{sU}, s{sW}, 5")
    g(f"s_add_u32 s{sU}, s{sU}, s{sJ}", "first logical block of this wave (then +128 each)")
    g(f"s_lshl_b32 s{sT0}, s{sU}, 2")
    g(f"v_lshrrev_b32 v{vX}, 4, v{vT2}", "g = lane>>4")
    g(f"v_and_b32 v{vX+1}, 3, v{vT2}", "c = lane&3")
    g(f"v_lshlrev_b32 v{vX+2}, 4, v{vX+1}")
    g(f"v_lshl_add_u32 v{vX+2}, v{vX}, 6, v{vX+2}", "16-byte chunk 4g+c of a row")
    g(f"v_bfe_u32 v{vX+3}, v{vT2}, 2, 2", "t = (lane>>2)&3")
    g(f"v_lshl_add_u32 v{vK0}, v{vX+3}, 13, v{vX+2}", "K: token 4t (+ load index)")
    g(f"v_add_u32 v{vK1}, 0x1000, v{vK0}")
    g(f"v_lshl_add_u32 v{vT1}, v{vX+3}, 8, v{vX+2}", "Q: head t")
    g(f"s_sub_u32 s{srdI[2]+2}, {hex(KV_BYTES)}, s{sT1}")
    g(f"s_mov_b32 s{srdI[2]+3}, 0x20000")
    g("s_waitcnt lgkmcnt(0)")
    g(f"s_add_u32 s10, s10, s{sT0}")
    g("s_addc_u32 s11, s11, 0")
    g(f"s_load_dword s{sOf[1]}, s[10:11], 0", "first two blocks")
    g(f"s_load_dword s{sOf[2]}, s[10:11], 512")
    g(f"s_load_dword s{sCL}, s[12:13], 0")
    g(f"s_lshl2_add_u32 s4, s{sT1}, s4")
    g("s_addc_u32 s5, s5, 0")
    g(f"global_load_dwordx4 v[{vQ}:{vQ+3}], v{vT1}, s[4:5]")
    g(f"s_add_u32 s{srdI[2]}, s6, s{sT1}")
    g(f"s_addc_u32 s{srdI[2]+1}, s7, 0")
    g("s_waitcnt lgkmcnt(0)")
    g(f"s_lshl_b32 s{sOf[1]}, s{sOf[1]}, 15")
    g(f"s_lshl_b32 s{sOf[2]}, s{sOf[2]}, 15")
    def pro(i):
        ld(i // 4, i % 4, vK0 if (i & 2) == 0 else vK1, srdI[2], sOf[1 + i // 4])
    for i in range(schA[2]):
        pro(i)
    stamp(1)
    g(f"s_bitcmp1_b32 {hex(bmask)}, s{sH}")
    g("s_cbranch_scc0 L_noextra")
    for i in range(schA[2], schB[2]):
        pro(i)
    g.lab("L_noextra")
    epoch_load()
    g(f"s_mov_b64 s[{sKb}:{sKb+1}], s[{srdI[2]}:{srdI[2]+1}]")
    g(f"s_add_u32 s{sVb}, s8, s{sT1}")
    g(f"s_addc_u32 s{sVb+1}, s9, 0")
    g(f"s_mov_b32 s{srdI[1]+2}, s{srdI[2]+2}")
    g(f"s_mov_b32 s{srdI[1]+3}, 0x20000")
    g(f"s_mov_b64 s[{sMk[2]}:{sMk[2]+1}], 0")
    ws_srd()
    g(f"v_and_b32 v{vX+4}, 15, v{vT2}")
    g(f"v_lshlrev_b32 v{vX+4}, 4, v{vX+4}")
    g(f"v_lshl_add_u32 v{vV0}, v{vX}, 13, v{vX+4}", "V: token 4g (+ load index), chunk lane&15")
    g(f"v_add_u32 v{vV1}, 0x1000, v{vV0}")
    g(f"v_lshl_add_u32 v{vPo}, v{vX}, 10, v{vX+4}", "publish offset q*1024 + x*16")
    g(f"s_lshl_b32 s{sPub}, s{sH}, 5")
    g(f"s_add_u32 s{sPub}, s{sPub}, s{sJ}")
    g(f"s_lshl4_add_u32 s{sPub}, s{sPub}, s{sW}")
    g(f"s_lshl_b32 s{sPub}, s{sPub}, 8", "(h*32+j)*4096 + w*256")
    g(f"s_lshl_b32 s{sT0}, s{sW}, 13")
    g(f"v_lshl_add_u32 v{vAw}, v{vT2}, 4, s{sT0}", "LDS: accumulator dump")
    g(f"v_lshl_add_u32 v{vSa}, v{vT2}, 2, s{sT0}", "LDS: score slot")
    g.cm("cross-wave sum: lane (q, 4nn+2hf+rr) reads byte hf*1024 + q*256 + w*64 + nn*16 + rr*8 of every dump")
    g(f"v_lshlrev_b32 v{vOr}, 4, v{vX+3}")
    g(f"v_lshl_add_u32 v{vOr}, v{vX}, 8, v{vOr}")
    g(f"v_bfe_u32 v{vX+5}, v{vT2}, 1, 1")
    g(f"v_lshl_add_u32 v{vOr}, v{vX+5}, 10, v{vOr}")
    g(f"v_and_b32 v{vX+5}, 1, v{vT2}")
    g(f"v_lshl_add_u32 v{vOr}, v{vX+5}, 3, v{vOr}")
    g(f"s_lshl_b32 s{sT0}, s{sW}, 6")
    g(f"v_add_u32 v{vOr}, s{sT0}, v{vOr}")
    g(f"v_lshlrev_b32 v{vFr}, 2, v{vX}")
    g.cm("finishing role: the waves of slices 24..31 each own 16 outputs of the head")
    g(f"s_sub_i32 s{sSl}, s{sJ}, 24")
    g(f"s_lshl2_add_u32 s{sSl}, s{sSl}, s{sW}")
    g(f"s_lshl_b32 s{sT0}, s{sH}, 17")
    g(f"s_lshl_b32 s{sT2}, s{sSl}, 7")
    g(f"s_add_u32 s{sO[0]}, s{sT0}, s{sT2}")
    for i in range(1, 4):
        g(f"s_add_u32 s{sO[i]}, s{sO[0]}, {hex(4096*i)}")
    g(f"s_lshl_b32 s{sOut}, s{sH}, 10")
    g(f"s_lshl_b32 s{sT0}, s{sSl}, 5")
    g(f"s_add_u32 s{sOut}, s{sOut}, s{sT0}")
    g(f"s_mov_b32 s{srdO}, s14", "descriptor of d_out")
    g(f"s_mov_b32 s{srdO+1}, s15")
    g(f"s_mov_b32 s{srdO+2}, 0x2000")
    g(f"s_mov_b32 s{srdO+3}, 0x20000")
    g(f"v_and_b32 v{vCout}, 7, v{vT2}")
    g(f"v_lshrrev_b32 v{vCo}, 3, v{vT2}")
    g(f"v_lshlrev_b32 v{vCo}, 14, v{vCo}")
    g(f"v_lshl_add_u32 v{vCo}, v{vCout}, 4, v{vCo}")
    g(f"v_lshlrev_b32 v{vCout}, 2, v{vCout}")
    g(f"s_bfe_u32 s{sT0}, s{sSl}, 0x20003")
    g(f"s_lshl_b32 s{sT0}, s{sT0}, 2")
    g(f"v_mov_b32 v{vCw}, s{sT0}")
    g(f"v_lshlrev_b32 v{vMLr}, 5, v{vX+3}")
    g(f"s_lshl_b32 s{sT0}, s{sW}, 3")
    g(f"v_add_u32 v{vMLw}, s{sT0}, v{vMLr}")
    g(f"v_lshl_add_u32 v{vTok}, v{vX}, 2, v{vX+1}", "token of this lane's score: 4g + c")
    g(f"v_mov_b32 v{vSc}, {f32(128 ** -0.5 * LOG2E)}", "log2(e)/sqrt(128)")
    g(f"v_mov_b32 v{vNEG}, 0xff800000")
    g(f"v_mov_b32 v{vM}, {f32(-1e30)}")
    g(f"v_mov_b32 v{vL}, 0")
    for r in range(8):
        g(f"v_mov_b32 v{vA0+r}, 0")
    for x in range(3):
        m32 = hex(0x11111111 << (x + 1))
        g(f"s_mov_b32 s{sQm[x]}, {m32}")
        g(f"s_mov_b32 s{sQm[x]+1}, {m32}")
    g(f"v_lshlrev_b32 v{vX+5}, 4, v{vX+5}")
    g(f"v_mov_b32 v{vX+6}, 0xffff")
    g(f"v_lshlrev_b32 v{vX+6}, v{vX+5}, v{vX+6}")
    g(f"v_cmp_gt_u32 vcc, 2, v{vX+1}")
    g(f"v_min_u32 v{vT0}, 40, v{vT2}")
    g(f"s_mov_b32 s{sS}, 0")
    g(f"v_cndmask_b32 v{vMsk0}, 0, v{vX+6}, vcc", "P operand masks: half-word c of a 4 x bf16 group")
    g(f"v_xor_b32 v{vMsk1}, v{vMsk0}, v{vX+6}")
    clamp_cl()
    g(f"s_add_u32 s{sN}, s{sCL}, 15")
    g(f"s_lshr_b32 s{sN}, s{sN}, 4")
    g(f"s_add_u32 s{sN}, s{sN}, 127")
    g(f"s_sub_u32 s{sN}, s{sN}, s{sU}")
    g(f"s_lshr_b32 s{sN}, s{sN}, 7", "blocks of this wave")
    g(f"s_max_u32 s{sN}, s{sN}, 2", "the two already requested are walked (masked if past the end)")
    pk = sum(int(c, 16) << (4 * i) for i, c in enumerate(rtab))
    g(f"s_getreg_b32 s{sBo}, hwreg(HW_REG_XCC_ID, 0, 3)")
    g(f"s_lshl_b32 s{sBo}, s{sBo}, 2")
    g(f"s_lshr_b32 s{sBo}, {hex(pk)}, s{sBo}")
    g(f"s_and_b32 s{sBo}, s{sBo}, 15")
    g(f"s_sub_i32 s{sBo}, s{sN}, s{sBo}", "late-starting dies take their last blocks with more loads in flight")
    g(f"s_lshl_b32 s{sT0}, s{sU}, 4")
    g(f"s_sub_i32 s{sRem}, s{sCL}, s{sT0}", "tokens left at this wave's block 0")
    g(f"s_lshl_b32 s{sT0}, s{sW}, 2")
    g(f"v_lshl_add_u32 v{vT0}, v{vT0}, 4, s{sT0}")
    g("s_barrier", "helper's block list is in LDS")
    g(f"ds_read_b32 v{vBT}, v{vT0} offset:{LLO}", "lane i = byte offset of this wave's block i")
    g("s_waitcnt lgkmcnt(0)")
    g(f"s_bitcmp1_b32 {hex(bmask)}, s{sH}")
    g("s_cbranch_scc1 L_k0B")

    D = lambda m, r=0: vD + 4 * m + r
    def phases(sch, sfx):
        issue, wait, _ = sch
        used = sorted({(du, pos >> 1) for p in issue for du, pos in issue[p]})
        dus = sorted({du for du, _ in used})
        for half in (0, 1):
            g.lab(f"L_k{half}{sfx}", "phase 1: one K block; the load stream runs on into V")
            g(f"s_add_u32 s{sT0}, s{sS}, 2")
            g(f"s_mov_b32 s{sOf[1]}, s{sOf[2]}")
            if 1 in dus:
                g(f"s_mov_b64 s[{srdI[1]}:{srdI[1]+1}], s[{srdI[2]}:{srdI[2]+1}]")
                g(f"s_mov_b64 s[{sMk[1]}:{sMk[1]+1}], s[{sMk[2]}:{sMk[2]+1}]")
            g(f"s_cmp_ge_u32 s{sT0}, s{sN}")
            g(f"s_cselect_b32 s{sT1}, s{sN}, 0")
            g(f"s_cselect_b64 s[{srdI[2]}:{srdI[2]+1}], s[{sVb}:{sVb+1}], s[{sKb}:{sKb+1}]")
            g(f"s_cselect_b64 s[{sMk[2]}:{sMk[2]+1}], -1, 0")
            g(f"s_sub_u32 s{sT0}, s{sT0}, s{sT1}")
            g(f"v_readlane_b32 s{sOf[2]}, v{vBT}, s{sT0}")
            for du, o in used:
                g(f"v_cndmask_b32 v{vI[(du, o)]}, v{vK0 + o}, v{vV0 + o}, s[{sMk[du]}:{sMk[du]+1}]")
            g(f"v_cmp_gt_i32 vcc, s{sRem}, v{vTok}")
            g(f"s_add_u32 s{sS}, s{sS}, 1")
            g(f"s_sub_i32 s{sRem}, s{sRem}, 0x800")
            for p in range(4):
                r = vR + 16 * half + 4 * p
                g(f"s_waitcnt vmcnt({wait[p]})")
                g(f"v_mfma_f32_16x16x32_bf16 v[{D(p)}:{D(p,3)}], v[{r}:{r+3}], v[{vQ}:{vQ+3}], 0")
                for du, pos in issue[p]:
                    ld((half + du) & 1, pos, vI[(du, pos >> 1)], srdI[du], sOf[du])
            g(f"s_nop {4 - len(issue[3])}")
            for r in range(4):
                for m in range(4):
                    op = "v_mul_f32_dpp" if r == 0 else "v_fmac_f32_dpp"
                    g(f"{op} v{D(m)}, v{D(m,r)}, v{vSc} quad_perm:[{r},{r},{r},{r}] row_mask:0xf bank_mask:0xf")
            g(f"v_cndmask_b32 v{vS}, v{D(0)}, v{D(1)}, s[{sQm[0]}:{sQm[0]+1}]")
            g(f"v_cndmask_b32 v{vS}, v{vS}, v{D(2)}, s[{sQm[1]}:{sQm[1]+1}]")
            g(f"v_cndmask_b32 v{vS}, v{vS}, v{D(3)}, s[{sQm[2]}:{sQm[2]+1}]")
            g(f"v_cndmask_b32 v{vS}, v{vNEG}, v{vS}, vcc", "positions past context_len")
            g(f"ds_write_b32 v{vSa}, v{vS}")
            g(f"v_max_f32 v{vT0}, v{vM}, v{vS}")
            g(f"v_sub_f32 v{vT1}, v{vM}, v{vT0}")
            g(f"v_sub_f32 v{vT2}, v{vS}, v{vT0}")
            g(f"v_exp_f32 v{vT1}, v{vT1}")
            g(f"v_exp_f32 v{vT2}, v{vT2}")
            g(f"v_mov_b32 v{vM}, v{vT0}")
            g(f"v_add_u32 v{vSa}, 0x100, v{vSa}")
            g(f"v_fma_f32 v{vL}, v{vL}, v{vT1}, v{vT2}")
            g(f"s_cmp_lt_u32 s{sS}, s{sN}")
            g(f"s_cbranch_scc0 L_mid{sfx}" if half == 0 else f"s_cbranch_scc1 L_k0{sfx}")
        g.lab(f"L_mid{sfx}", "wave max and sum per head, then the workgroup max")
        def allred(op, r, t):
            g(f"{op}_dpp v{r}, v{r}, v{r} quad_perm:[1,0,3,2] row_mask:0xf bank_mask:0xf")
            g("s_nop 1")
            g(f"{op}_dpp v{r}, v{r}, v{r} quad_perm:[2,3,0,1] row_mask:0xf bank_mask:0xf")
            swaps(op, r, t)
        stamp(5)
        g(f"s_lshl_b32 s{sT0}, s{sN}, 8")
        g(f"v_subrev_u32 v{vSa}, s{sT0}, v{vSa}")
        allred("v_max_f32", vM, vT1)
        g(f"v_sub_f32 v{vT0}, v{vT0}, v{vM}")
        g(f"v_exp_f32 v{vT0}, v{vT0}")
        g(f"ds_read_b32 v{vSn}, v{vSa}")
        g(f"v_mul_f32 v{vL}, v{vL}, v{vT0}")
        g("s_nop 1")
        allred("v_add_f32", vL, vT1)
        g("s_mov_b64 exec, 0x1111")
        g(f"ds_write_b64 v{vMLw}, v[{vM}:{vL}] offset:{MLO}")
        g("s_mov_b64 exec, -1")
        g("s_waitcnt lgkmcnt(0)")
        g("s_barrier")
        g(f"ds_read_b128 v[{vX}:{vX+3}], v{vMLr} offset:{MLO}")
        g(f"ds_read_b128 v[{vX+4}:{vX+7}], v{vMLr} offset:{MLO+16}")
        make_tag()
        g(f"v_mov_b32 v{vP+2}, s{sTag}")
        g(f"v_mov_b32 v{vP+3}, s{sTag+1}")
        g(f"s_mov_b32 s{sS}, 0")
        g("s_waitcnt lgkmcnt(0)")
        g(f"v_max3_f32 v{vM}, v{vX}, v{vX+2}, v{vX+4}")
        g(f"v_max_f32 v{vM}, v{vM}, v{vX+6}")
        g(f"s_bitcmp1_b32 s{sN}, 0")
        g(f"s_cbranch_scc1 L_v1{sfx}")
        for half in (0, 1):
            g.lab(f"L_v{half}{sfx}", "phase 2: one V block")
            if sfx == "A":
                g(f"s_cmp_lt_i32 s{sS}, s{sBo}")
                g(f"s_cbranch_scc1 L_nb{half}")
                for i in range(schA[2], schB[2]):
                    ld((half + 1) & 1, i % 4, vV0 + ((i % 4) >> 1), srdI[2], sOf[2])
                g(f"s_branch L_v{half}B")
                g.lab(f"L_nb{half}")
            g(f"s_add_u32 s{sT0}, s{sS}, 2")
            g(f"s_mov_b32 s{sOf[1]}, s{sOf[2]}")
            g(f"v_readlane_b32 s{sOf[2]}, v{vBT}, s{sT0}")
            g("s_waitcnt lgkmcnt(0)")
            g(f"v_sub_f32 v{vS}, v{vSn}, v{vM}")
            g(f"v_exp_f32 v{vS}, v{vS}")
            g(f"ds_read_b32 v{vSn}, v{vSa} offset:256")
            g(f"v_cvt_pk_bf16_f32 v{vS}, v{vS}, v{vS}")
            g(f"v_add_u32 v{vSa}, 0x100, v{vSa}")
            g(f"s_add_u32 s{sS}, s{sS}, 1")
            for m in range(4):
                g(f"v_and_b32_dpp v{D(m)}, v{vS}, v{vMsk0} quad_perm:[{m},{m},{m},{m}] row_mask:0xf bank_mask:0xf")
                g(f"v_and_b32_dpp v{D(m,1)}, v{vS}, v{vMsk1} quad_perm:[{m},{m},{m},{m}] row_mask:0xf bank_mask:0xf")
            g(f"s_cmp_lt_u32 s{sS}, s{sN}")
            for p in range(4):
                r = vR + 16 * half + 4 * p
                g(f"s_waitcnt vmcnt({wait[p]})")
                g(f"v_mfma_f32_16x16x16_bf16 v[{vA0}:{vA0+3}], v[{D(p)}:{D(p,1)}], v[{r}:{r+1}], v[{vA0}:{vA0+3}]")
                g(f"v_mfma_f32_16x16x16_bf16 v[{vA1}:{vA1+3}], v[{D(p)}:{D(p,1)}], v[{r+2}:{r+3}], v[{vA1}:{vA1+3}]")
                if p == 3:
                    g("s_cbranch_scc0 L_fin")
                for du, pos in issue[p]:
                    ld((half + du) & 1, pos, vV0 + (pos >> 1), srdI[2], sOf[du])
            if half == 1:
                g(f"s_branch L_v0{sfx}")
    phases(schA, "A")
    phases(schB, "B")

    g.lab("L_fin", "sum the four waves, scale, publish")
    g("s_nop 6")
    stamp(3)
    g(f"ds_write_b128 v{vAw}, v[{vA0}:{vA0+3}]")
    g(f"ds_write_b128 v{vAw}, v[{vA1}:{vA1+3}] offset:1024")
    g("s_waitcnt lgkmcnt(0)")
    g("s_barrier", "also holds until the helper has left its factors and ended")
    g(f"ds_read_b32 v{vT2}, v{vCw} offset:{FLO+32}")
    for w in range(4):
        g(f"ds_read_b64 v[{vX+2*w}:{vX+2*w+1}], v{vOr} offset:{8192*w}")
    g(f"ds_read_b32 v{vT0}, v{vFr} offset:{FLO}")
    g(f"ds_read_b32 v{vT1}, v{vCw} offset:{FLO+16}")
    g("s_waitcnt lgkmcnt(4)")
    g(f"v_cmp_ne_u32 vcc, 0, v{vT2}")
    g(f"v_pk_add_f32 v[{vX}:{vX+1}], v[{vX}:{vX+1}], v[{vX+2}:{vX+3}]")
    g("s_waitcnt lgkmcnt(2)")
    g(f"v_pk_add_f32 v[{vX+4}:{vX+5}], v[{vX+4}:{vX+5}], v[{vX+6}:{vX+7}]")
    g(f"v_pk_add_f32 v[{vX}:{vX+1}], v[{vX}:{vX+1}], v[{vX+4}:{vX+5}]")
    g("s_waitcnt lgkmcnt(0)")
    g(f"v_mul_f32 v{vP}, v{vX}, v{vT0}")
    g(f"v_mul_f32 v{vP+1}, v{vX+1}, v{vT0}")
    g("s_cbranch_vccz L_far")
    g(f"buffer_store_dwordx4 v[{vP}:{vP+3}], v{vPo}, s[{srdW}:{srdW+3}], s{sPub} offen", "readers share this L2")
    g.lab("L_pubd")
    stamp(2)
    g(f"s_cmp_lt_u32 s{sJ}, 24")
    if stamps:
        g("s_cbranch_scc0 L_cons")
        g("s_waitcnt vmcnt(0)")
        g("s_branch L_pdump")
        g.lab("L_cons")
    else:
        g("s_cbranch_scc1 L_end")
    cO = vR
    g(f"v_readfirstlane_b32 s{sT0}, v{vT1}")
    g("v_mov_b32 v16, 0")
    g("v_mov_b32 v17, 0")
    for i in range(4):
        g(f"s_mov_b64 s[{sPm[i]}:{sPm[i]+1}], -1")
    g(f"s_mov_b32 s{sCnt}, 0")
    g(f"s_cmp_lg_u32 s{sT0}, 0")
    g("s_cbranch_scc1 L_slow")
    g.lab("L_poll", "gather one 128-byte line from each of the 32 partials; only missing lanes are asked again")
    for i in range(4):
        g(f"s_mov_b64 exec, s[{sPm[i]}:{sPm[i]+1}]")
        g(f"s_cbranch_execz L_sk{i}")
        g(f"buffer_load_dwordx4 v[{cO+4*i}:{cO+4*i+3}], v{vCo}, s[{srdW}:{srdW+3}], s{sO[i]} offen sc1")
        g.lab(f"L_sk{i}")
    g("s_mov_b64 exec, -1")
    g(f"s_add_u32 s{sCnt}, s{sCnt}, 1")
    g("s_waitcnt vmcnt(0)")
    for i in range(4):
        g(f"v_cmp_ne_u64 s[{sPm[i]}:{sPm[i]+1}], s[{sTag}:{sTag+1}], v[{cO+4*i+2}:{cO+4*i+3}]")
    g(f"v_pk_add_f32 v[18:19], v[{cO}:{cO+1}], v[{cO+4}:{cO+5}]")
    g(f"v_pk_add_f32 v[20:21], v[{cO+8}:{cO+9}], v[{cO+12}:{cO+13}]")
    g("v_pk_add_f32 v[18:19], v[18:19], v[16:17]")
    g(f"s_cmp_ge_u32 s{sCnt}, {hex(SPIN * 2)}")
    g("v_pk_add_f32 v[18:19], v[18:19], v[20:21]")
    g("s_cbranch_scc1 L_got")
    g(f"s_or_b64 s[{sPm[4]}:{sPm[4]+1}], s[{sPm[0]}:{sPm[0]+1}], s[{sPm[1]}:{sPm[1]+1}]")
    g(f"s_or_b64 s[{sPm[4]}:{sPm[4]+1}], s[{sPm[4]}:{sPm[4]+1}], s[{sPm[2]}:{sPm[2]+1}]")
    g(f"s_or_b64 s[{sPm[4]}:{sPm[4]+1}], s[{sPm[4]}:{sPm[4]+1}], s[{sPm[3]}:{sPm[3]+1}]")
    g("s_cbranch_scc1 L_poll")
    g.lab("L_got")
    g("s_nop 0")
    g("v_permlane32_swap_b32 v18, v19")
    g("v_add_f32 v18, v18, v19")
    g("v_mov_b32 v19, v18")
    g("s_nop 1")
    g("v_permlane16_swap_b32 v18, v19")
    g("v_add_f32 v18, v18, v19")
    g("s_nop 1")
    g("v_add_f32_dpp v18, v18, v18 row_ror:8 row_mask:0xf bank_mask:0xf")
    g("v_mov_b32 v19, v18")
    g("s_nop 1")
    g("v_permlane32_swap_b32 v18, v19")
    g("v_cvt_pk_bf16_f32 v18, v18, v19")
    g("s_mov_b64 exec, 0xff")
    g(f"buffer_store_dword v18, v{vCout}, s[{srdO}:{srdO+3}], s{sOut} offen")
    g(f"s_cmp_eq_u32 s{sSl}, 0")
    g("s_cbranch_scc0 L_pdump" if stamps else "s_cbranch_scc0 L_end")
    g("s_mov_b64 exec, 1")
    g("v_mov_b32 v14, 0")
    g(f"global_store_dwordx2 v14, v[{vP+2}:{vP+3}], s[{sEp}:{sEp+1}]", "every reader of the old epoch has published by now")
    if stamps:
        g.lab("L_pdump")
        stamp(4)
        dump_stamps()
    g.lab("L_end")
    g("s_endpgm")
    g.lab("L_far")
    g(f"buffer_store_dwordx4 v[{vP}:{vP+3}], v{vPo}, s[{srdW}:{srdW+3}], s{sPub} offen sc1")
    g("s_branch L_pubd")

    sB, sPh, sTok = 39, 40, 41
    srdVv = srdI[2]
    g.lab("L_slow", "masked positions carry weight (no score above the mask value): add their V as the reference does")
    g("v_and_b32 v22, 63, v0")
    g("v_lshrrev_b32 v23, 3, v22")
    g(f"s_and_b32 s{sT1}, s{sSl}, 7")
    g(f"s_lshl_b32 s{sT1}, s{sT1}, 5")
    g(f"v_lshl_add_u32 v24, v23, 11, v{vCout}")
    g(f"v_add_u32 v24, s{sT1}, v24")
    g("v_add_u32 v25, 0x4000, v24")
    g("v_add_u32 v26, 8, v23")
    g(f"s_lshr_b32 s{sB}, s{sCL}, 4")
    g(f"s_lshl_b32 s{sT1}, s{sU}, 2")
    g(f"s_sub_u32 s10, s10, s{sT1}")
    g("s_subb_u32 s11, s11, 0")
    g.lab("L_slow_loop")
    g(f"s_cmp_lt_u32 s{sB}, 0x1000")
    g("s_cbranch_scc0 L_slow_end")
    g(f"s_lshl_b32 s{sT1}, s{sB}, 2")
    g(f"s_load_dword s{sPh}, s[10:11], s{sT1}")
    g(f"s_lshl_b32 s{sTok}, s{sB}, 4")
    g(f"s_sub_i32 s{sTok}, s{sCL}, s{sTok}")
    g("s_waitcnt lgkmcnt(0)")
    g(f"s_lshl_b32 s{sPh}, s{sPh}, 15")
    g(f"buffer_load_dword v27, v24, s[{srdVv}:{srdVv+3}], s{sPh} offen")
    g(f"buffer_load_dword v28, v25, s[{srdVv}:{srdVv+3}], s{sPh} offen")
    g(f"v_cmp_le_i32 vcc, s{sTok}, v23")
    g(f"v_cmp_le_i32 s[76:77], s{sTok}, v26")
    g("s_waitcnt vmcnt(0)")
    g("v_cndmask_b32 v27, 0, v27, vcc")
    g("v_cndmask_b32 v28, 0, v28, s[76:77]")
    g("v_lshlrev_b32 v29, 16, v27")
    g("v_and_b32 v27, 0xffff0000, v27")
    g("v_add_f32 v16, v16, v29")
    g("v_add_f32 v17, v17, v27")
    g("v_lshlrev_b32 v29, 16, v28")
    g("v_and_b32 v28, 0xffff0000, v28")
    g("v_add_f32 v16, v16, v29")
    g("v_add_f32 v17, v17, v28")
    g(f"s_add_u32 s{sB}, s{sB}, 1")
    g("s_branch L_slow_loop")
    g.lab("L_slow_end")
    g(f"v_mul_f32 v16, s{sT0}, v16")
    g(f"v_mul_f32 v17, s{sT0}, v17")
    g("s_branch L_poll")

    vLane = vT2
    hML, hG = 32, 40
    hOffML, hLf, hLml, hOffPub, hOffX = 2, 4, 6, 7, 44
    sMLr, sMLw, sNb, sBk, sX = 39, 40, 46, 48, 47
    g.raw(".p2align 6")
    g.lab("L_helper")
    g(f"s_lshl_b32 s{sT2}, s{sJ}, 2")
    g(f"v_lshl_add_u32 v20, v{vLane}, 7, s{sT2}", "table entries j + 32*lane, j + 32*(lane+64)")
    g("v_add_u32 v21, 0x2000, v20")
    g(f"s_lshl_b32 s{sT0}, s{sH}, 5")
    g(f"s_add_u32 s{sT0}, s{sT0}, s{sJ}")
    g(f"s_lshl_b32 s{sT0}, s{sT0}, 12")
    g(f"v_lshlrev_b32 v12, 6, v{vLane}")
    g(f"s_and_b32 s{sT2}, s{sJ}, 7")
    g(f"s_lshl3_add_u32 s{sT2}, s{sH}, s{sT2}")
    g(f"s_lshl_b32 s{sT2}, s{sT2}, 7")
    g(f"v_add_u32 v13, s{sT2}, v12")
    g("v_mov_b32 v16, 0")
    g("s_waitcnt lgkmcnt(0)")
    g("global_load_dword v22, v20, s[10:11]")
    g("global_load_dword v23, v21, s[10:11]")
    g(f"s_load_dword s{sCL}, s[12:13], 0")
    ws_srd()
    g.cm("memory is idle now: pull in the lines that will be written at the end (values unused)")
    g(f"buffer_load_dword v64, v12, s[{srdW}:{srdW+3}], s{sT0} offen sc1")
    g("s_mov_b64 exec, 3")
    g("global_load_dword v65, v13, s[14:15] sc1")
    g("s_mov_b64 exec, -1")
    g(f"v_add_u32 v25, 64, v{vLane}")
    g(f"v_mov_b32 v24, v{vLane}")
    g("v_bfrev_b32 v28, 1", "0x80000000: an offset past the buffer, loads return 0")
    g(f"v_lshlrev_b32 v29, 2, v{vLane}")
    g("v_mov_b32 v18, 1")
    g(f"ds_write_b32 v29, v28 offset:{LLO+512}")
    g(f"ds_write_b32 v29, v16 offset:{CLO}")
    g("s_waitcnt lgkmcnt(0)")
    clamp_cl()
    g(f"s_add_u32 s{sNb}, s{sCL}, 15")
    g(f"s_lshr_b32 s{sNb}, s{sNb}, 4")
    g(f"s_add_u32 s{sNb}, s{sNb}, 31")
    g(f"s_sub_u32 s{sNb}, s{sNb}, s{sJ}")
    g(f"s_lshr_b32 s{sNb}, s{sNb}, 5", "blocks of this workgroup")
    g(f"s_sub_i32 s{sBk}, s{sNb}, 1")
    g(f"v_cmp_gt_i32 s[26:27], s{sBk}, v24", "movable: not the last (it may be partial) ...")
    g(f"v_cmp_gt_i32 s[28:29], s{sBk}, v25")
    g(f"v_cmp_gt_i32 s[30:31], s{sNb}, v24")
    g(f"v_cmp_gt_i32 s[34:35], s{sNb}, v25")
    g("s_andn2_b32 s26, s26, 0xff", "... and not the eight already requested")
    g("s_waitcnt vmcnt(2)")
    g.cm("counting sort by physical block id / 64")
    for r in (0, 1):
        g(f"v_lshrrev_b32 v{26+r}, 6, v{22+r}")
        g(f"v_min_u32 v{26+r}, 63, v{26+r}")
        g(f"v_lshlrev_b32 v{26+r}, 2, v{26+r}")
        g(f"s_mov_b64 exec, s[{26+2*r}:{27+2*r}]")
        g(f"ds_add_rtn_u32 v{20+r}, v{26+r}, v18 offset:{CLO}")
        g("s_mov_b64 exec, -1")
    g(f"ds_read_b32 v19, v29 offset:{CLO}")
    for r in (0, 1):
        g(f"v_lshlrev_b32 v{22+r}, 15, v{22+r}")
        g(f"v_cndmask_b32 v{22+r}, v28, v{22+r}, s[{30+4*r}:{31+4*r}]")
    g("s_waitcnt lgkmcnt(0)")
    g("v_sub_u32 v14, 8, v19")
    g("s_nop 0")
    for sh in (1, 2, 4, 8):
        g(f"v_add_u32_dpp v19, v19, v19 row_shr:{sh} row_mask:0xf bank_mask:0xf bound_ctrl:0")
        g("s_nop 1")
    g("v_add_u32_dpp v19, v19, v19 row_bcast:15 row_mask:0xa bank_mask:0xf")
    g("s_nop 1")
    g("v_add_u32_dpp v19, v19, v19 row_bcast:31 row_mask:0xc bank_mask:0xf")
    g("v_add_u32 v19, v19, v14", "first position of each bucket")
    g(f"ds_write_b32 v29, v19 offset:{CLO}")
    g(f"ds_read_b32 v14, v26 offset:{CLO}")
    g(f"ds_read_b32 v15, v27 offset:{CLO}")
    g("s_waitcnt lgkmcnt(0)")
    g("v_add_u32 v14, v14, v20")
    g("v_add_u32 v15, v15, v21")
    g("v_cndmask_b32 v24, v24, v14, s[26:27]")
    g("v_cndmask_b32 v25, v25, v15, s[28:29]")
    g("v_lshlrev_b32 v24, 2, v24")
    g("v_lshlrev_b32 v25, 2, v25")
    g(f"ds_write_b32 v24, v22 offset:{LLO}")
    g(f"ds_write_b32 v25, v23 offset:{LLO}")
    g("s_waitcnt lgkmcnt(0)")
    stamp(2)
    g("s_barrier")
    epoch_load()
    g(f"v_lshlrev_b32 v{hOffPub}, 4, v{vLane}")
    g(f"v_and_b32 v14, 3, v{vLane}", "q = lane&3")
    g(f"v_lshlrev_b32 v{hLml}, 5, v14")
    g(f"v_lshlrev_b32 v{hLf}, 2, v14")
    g(f"v_lshrrev_b32 v15, 2, v{vLane}")
    g("v_lshlrev_b32 v14, 4, v14")
    g(f"v_lshl_add_u32 v{hOffML}, v15, 7, v14")
    g(f"v_and_b32 v{hOffX}, 31, v{vLane}")
    g(f"v_lshlrev_b32 v{hOffX}, 7, v{hOffX}")
    g(f"s_lshl_b32 s{sT2}, s{sJ}, 7")
    g(f"s_lshl_b32 s{sMLr}, s{sH}, 12")
    g(f"s_add_u32 s{sMLr}, s{sMLr}, {hex(ML_BASE)}")
    g(f"s_add_u32 s{sMLw}, s{sMLr}, s{sT2}")
    g(f"s_getreg_b32 s{sX}, hwreg(HW_REG_XCC_ID)")
    g("s_waitcnt lgkmcnt(0)")
    make_tag()
    g(f"v_mov_b32 v{hG+2}, s{sTag}")
    g(f"v_mov_b32 v{hG+3}, s{sTag+1}")
    g("s_barrier", "the four waves have finished phase 1")
    g(f"ds_read_b128 v[20:23], v{hLml} offset:{MLO}")
    g(f"ds_read_b128 v[24:27], v{hLml} offset:{MLO+16}")
    g("s_waitcnt lgkmcnt(0)")
    g("v_max3_f32 v12, v20, v22, v24")
    g(f"v_max_f32 v{hG}, v12, v26")
    for w in range(4):
        g(f"v_sub_f32 v{20+2*w}, v{20+2*w}, v{hG}")
    for w in range(4):
        g(f"v_exp_f32 v{20+2*w}, v{20+2*w}")
    g(f"v_mul_f32 v{hG+1}, v20, v21")
    for w in range(1, 4):
        g(f"v_fmac_f32 v{hG+1}, v{20+2*w}, v{21+2*w}")
    g("s_mov_b64 exec, 0xf0")
    g(f"v_mov_b32 v{hG+1}, s{sX}", "granules 0-3: {M, L} per q head, 4-7: XCC id")
    g("s_mov_b64 exec, 0xff")
    g(f"buffer_store_dwordx4 v[{hG}:{hG+3}], v{hOffPub}, s[{srdW}:{srdW+3}], s{sMLw} offen sc1")
    g("s_mov_b64 exec, -1")
    g(f"s_mov_b32 s{sCnt}, 0")
    g.lab("L_pml", "wait for the 32 lines of this head (few polls: they share the memory pipe with the V stream)")
    g(f"s_sleep {mls}")
    g(f"buffer_load_dwordx4 v[{hML}:{hML+3}], v{hOffML}, s[{srdW}:{srdW+3}], s{sMLr} offen sc1")
    g(f"buffer_load_dwordx4 v[{hML+4}:{hML+7}], v{hOffML}, s[{srdW}:{srdW+3}], s{sMLr} offen offset:2048 sc1")
    g(f"buffer_load_dwordx4 v[48:51], v{hOffX}, s[{srdW}:{srdW+3}], s{sMLr} offen offset:64 sc1")
    g(f"s_add_u32 s{sCnt}, s{sCnt}, 1")
    g("s_waitcnt vmcnt(0)")
    g(f"v_cmp_ne_u64 s[{sPm[0]}:{sPm[0]+1}], s[{sTag}:{sTag+1}], v[{hML+2}:{hML+3}]")
    g(f"v_cmp_ne_u64 s[{sPm[1]}:{sPm[1]+1}], s[{sTag}:{sTag+1}], v[{hML+6}:{hML+7}]")
    g(f"v_cmp_ne_u64 s[{sPm[2]}:{sPm[2]+1}], s[{sTag}:{sTag+1}], v[50:51]")
    g(f"s_cmp_ge_u32 s{sCnt}, {hex(SPIN // 4)}")
    g("s_cbranch_scc1 L_gotml")
    g(f"s_or_b64 s[{sPm[0]}:{sPm[0]+1}], s[{sPm[0]}:{sPm[0]+1}], s[{sPm[1]}:{sPm[1]+1}]")
    g(f"s_or_b64 s[{sPm[0]}:{sPm[0]+1}], s[{sPm[0]}:{sPm[0]+1}], s[{sPm[2]}:{sPm[2]+1}]")
    g("s_cbranch_scc1 L_pml")
    g.lab("L_gotml")
    stamp(1)
    def allred_pl(op, r, t):
        g("s_nop 1")
        g(f"{op}_dpp v{r}, v{r}, v{r} row_ror:4 row_mask:0xf bank_mask:0xf")
        g("s_nop 1")
        g(f"{op}_dpp v{r}, v{r}, v{r} row_ror:8 row_mask:0xf bank_mask:0xf")
        swaps(op, r, t)
    g(f"v_cmp_ne_u32 vcc, s{sX}, v49")
    g("s_cmp_eq_u64 vcc, 0")
    g(f"s_cselect_b32 s{sBk}, 1, 0", "all 32 workgroups of this head sit behind one L2")
    g(f"v_mov_b32 v50, s{sBk}")
    g.cm("masked positions score bf16(-1e9): they join the max and the sum whenever there are any")
    g(f"s_sub_u32 s{sT2}, 0x10000, s{sCL}")
    g(f"s_cmp_eq_u32 s{sT2}, 0")
    g(f"s_mov_b32 s{sT0}, {f32(SM2)}")
    g(f"s_cmov_b32 s{sT0}, 0xff800000")
    g(f"v_max3_f32 v12, v{hML}, v{hML+4}, s{sT0}")
    allred_pl("v_max_f32", 12, 13)
    g(f"v_sub_f32 v14, v{hML}, v12")
    g(f"v_sub_f32 v15, v{hML+4}, v12")
    g(f"v_sub_f32 v18, s{sT0}, v12")
    g(f"v_sub_f32 v19, v{hG}, v12")
    g("v_exp_f32 v14, v14")
    g("v_exp_f32 v15, v15")
    g("v_exp_f32 v18, v18")
    g("v_exp_f32 v19, v19")
    g(f"v_cvt_f32_u32 v20, s{sT2}")
    g(f"v_mul_f32 v14, v14, v{hML+1}")
    g(f"v_fmac_f32 v14, v15, v{hML+5}")
    allred_pl("v_add_f32", 14, 13)
    g("v_fmac_f32 v14, v18, v20", "softmax denominator")
    g("v_rcp_f32 v14, v14")
    g("s_mov_b64 exec, 0xf")
    g("v_mul_f32 v19, v19, v14")
    g("v_mul_f32 v18, v18, v14")
    g(f"ds_write_b32 v{hLf}, v19 offset:{FLO}")
    g(f"ds_write_b32 v{hLf}, v18 offset:{FLO+16}")
    g(f"ds_write_b32 v{hLf}, v50 offset:{FLO+32}")
    g("s_waitcnt lgkmcnt(0)")
    if stamps:
        for i in range(3, 6):
            stamp(i)
        dump_stamps()
    g("s_endpgm")
    g.raw('.section .rodata,"a"')
    g.raw(".p2align 6")
    g.raw(kd(main, NV, NS))
    return g.text()

if __name__ == "__main__":
    import argparse
    ap = argparse.ArgumentParser()
    ap.add_argument("-o", default=f"cdna_kernels/{NAME}.s")
    ap.add_argument("--da", default="5656")
    ap.add_argument("--db", default="8888")
    ap.add_argument("--hxor", type=int, default=3)
    ap.add_argument("--rtab", default="00002203")
    ap.add_argument("--mls", type=int, default=64)
    ap.add_argument("--stamps", action="store_true")
    a = ap.parse_args()
    open(a.o, "w").write(gen(DA=tuple(map(int, a.da)), DB=tuple(map(int, a.db)), hxor=a.hxor, rtab=a.rtab, mls=a.mls, stamps=a.stamps))
```

```python
import struct, math

NAME = "standalone__paged_block_table_kv_pagedattention__decode"
KV_BYTES = 4100 * 32768
WS_BYTES = 537395200
ML_BASE = 1 << 20
EP_BASE = ML_BASE + 0x8000
STAMP_BASE = 2 << 20
INC_LO, INC_HI = 0x7F4A7C15, 0x9E3779B9
SPIN = 0x200000
LOG2E = math.log2(math.e)
SM2 = -998244352.0 * LOG2E

def f32(x):
    return "0x%08x" % struct.unpack("<I", struct.pack("<f", x))[0]

HEADER = """; Kernarg layout for this problem (64 bytes, ptrs only, base s[0:1]):
"""

DOC = """; Split-KV decode attention in one launch.  256 workgroups = 8 kv heads x 32 slices of the context
;   middle   workgroup max; the helper trades {max, sum} with the other 31 workgroups of the head and
; Hand-offs are 16-byte granules {data, data, tag64}; tag = epoch word found in d_ws + constant, stored back at
"""

class G:
    def __init__(s):
        s.L = []
    def __call__(s, t, c=None):
        s.L.append("    " + t + (("" if c is None else " " * max(1, 62 - len(t)) + "; " + c)))
    def lab(s, t, c=None):
        s.L.append(t + ":" + ("" if c is None else "   ; " + c))
    def raw(s, t):
        s.L.append(t)
    def cm(s, t):
        s.L.append("    ; " + t)
    def text(s):
        return "\n".join(s.L) + "\n"

def kd(name, vgpr, sgpr):
    acc = (vgpr + 3) // 4 * 4
    return f""".amdhsa_kernel {name}
  .amdhsa_next_free_vgpr {vgpr}
  .amdhsa_next_free_sgpr {sgpr}
  .amdhsa_accum_offset {acc}
  .amdhsa_group_segment_fixed_size 0
  .amdhsa_kernarg_size 64
  .amdhsa_user_sgpr_count 2
  .amdhsa_user_sgpr_kernarg_segment_ptr 1
  .amdhsa_system_sgpr_workgroup_id_x 1
.end_amdhsa_kernel
"""

def schedule(dist):
    issue = {p: [] for p in range(4)}
    for i in range(40, 44):
        c = i - dist[i % 4]
        issue[c % 4].append((i // 4 - c // 4, i % 4))
    t = [i - dist[i % 4] for i in range(80)]
    assert all(t[i] <= t[i + 1] for i in range(79))
    for p in issue:
        issue[p].sort()
    wait = {p: max(i for i in range(80) if t[i] < 40 + p) - (40 + p) for p in range(4)}
    npro = sum(1 for i in range(80) if t[i] < 0)
    assert all(1 <= du <= 2 for p in issue for du, _ in issue[p]) and max(dist) <= 8
    return issue, wait, npro

def gen(DA=(5,6,5,6), DB=(8,8,8,8), bmask=0x22, hxor=3, rtab="00002203", mls=64, stamps=False, cpf=0):
    g = G()
    MLO = 32768
    FLO = MLO + 128
    LLO = FLO + 128
    CLO = LLO + 768
    LDS = CLO + 256
    vK0, vK1, vV0, vV1 = 1, 2, 3, 4
    vMLw, vBT, vMLr = 5, 6, 7
    vQ = 8
    vA0, vA1 = 12, 16
    vM, vL, vSc, vTok = 20, 21, 22, 23
    vMsk0, vMsk1, vS, vSn = 24, 25, 26, 27
    vT0, vT1, vT2, vNEG = 28, 29, 30, 31
    vD = 32
    vI = {(1, 0): 48, (1, 1): 49, (2, 0): 50, (2, 1): 51}
    vP = 52
    vAw, vOr, vPo, vSa, vFr = 56, 57, 58, 59, 60
    vCo, vCout, vCw = 61, 62, 63
    vR = 64
    vX = 96
    NV = 104
    sW, sH, sJ, sU = 3, 36, 37, 38
    sS, sN, sRem, sT0, sT1, sT2 = 39, 40, 41, 42, 43, 44
    sCL = 45
    sOf = {1: 46, 2: 47}
    srdI = {1: 48, 2: 52}
    srdW = 56
    sPub = 62
    sKb, sVb = 26, 28
    sMk = {1: 30, 2: 32}
    sQm = [34, 60, 76]
    sE, sEp, sTag = 20, 22, 24
    sSt = 80
    sSl, sOut, sCnt, sBo = 64, 63, 33, 65
    sO = [68, 69, 70, 71]
    srdO = 72
    sPm = [26, 28, 30, 34, 60]
    NS = 96 if stamps else 78
    def stamp(i):
        if stamps:
            g(f"s_memrealtime s[{sSt + 2*i}:{sSt + 2*i + 1}]")
    def dump_stamps():
        if not stamps:
            return
        g("s_mov_b64 exec, 1")
        g("s_waitcnt lgkmcnt(0)")
        g(f"s_and_b32 s{sT0}, s{sJ}, 7")
        g(f"s_lshl3_add_u32 s{sT0}, s{sH}, s{sT0}")
        g(f"s_lshr_b32 s{sT1}, s{sJ}, 3")
        g(f"s_lshl_b32 s{sT1}, s{sT1}, 6")
        g(f"s_add_u32 s{sT0}, s{sT0}, s{sT1}")
        g(f"s_mul_i32 s{sT0}, s{sT0}, 5")
        g(f"s_add_u32 s{sT0}, s{sT0}, s{sW}")
        g(f"s_lshl_b32 s{sT0}, s{sT0}, 6")
        g(f"s_add_u32 s{sT0}, s{sT0}, {hex(STAMP_BASE)}")
        g("v_mov_b32 v5, 0")
        for i in range(6):
            g(f"v_mov_b32 v{32+i}, s{sSt+2*i}")
        g(f"s_getreg_b32 s{sT1}, hwreg(HW_REG_XCC_ID)")
        g(f"v_mov_b32 v{32+6}, s{sT1}")
        g(f"s_getreg_b32 s{sT1}, hwreg(HW_REG_HW_ID)")
        g(f"v_mov_b32 v{32+7}, s{sT1}")
        g(f"buffer_store_dwordx4 v[32:35], v5, s[{srdW}:{srdW+3}], s{sT0} offen")
        g(f"buffer_store_dwordx4 v[36:39], v5, s[{srdW}:{srdW+3}], s{sT0} offen offset:16")
    def ws_srd():
        g(f"s_mov_b32 s{srdW}, s18", "descriptor of d_ws")
        g(f"s_mov_b32 s{srdW+1}, s19")
        g(f"s_mov_b32 s{srdW+2}, {hex(WS_BYTES)}")
        g(f"s_mov_b32 s{srdW+3}, 0x20000")
    def epoch_load():
        g(f"s_lshl_b32 s{sEp}, s{sH}, 7")
        g(f"s_add_u32 s{sEp}, s{sEp}, {hex(EP_BASE)}")
        g(f"s_add_u32 s{sEp}, s18, s{sEp}")
        g(f"s_addc_u32 s{sEp+1}, s19, 0")
        g(f"s_load_dwordx2 s[{sE}:{sE+1}], s[{sEp}:{sEp+1}], 0", "epoch word of this head")
    def make_tag():
        g(f"s_add_u32 s{sTag}, s{sE}, {hex(INC_LO)}", "this launch's tag")
        g(f"s_addc_u32 s{sTag+1}, s{sE+1}, {hex(INC_HI)}")
    def clamp_cl():
        g(f"s_max_i32 s{sCL}, s{sCL}, 0")
        g(f"s_min_i32 s{sCL}, s{sCL}, 0x10000")
    def ld(half, pos, vo, srd, so):
        r = vR + 16 * half + 4 * pos
        off = " offset:2048" if (pos & 1) else ""
        g(f"buffer_load_dwordx4 v[{r}:{r+3}], v{vo}, s[{srd}:{srd+3}], s{so} offen{off} nt")
    def swaps(op, r, t):
        g(f"v_mov_b32 v{t}, v{r}")
        g("s_nop 1")
        g(f"v_permlane16_swap_b32 v{r}, v{t}")
        g(f"{op} v{r}, v{r}, v{t}")
        g(f"v_mov_b32 v{t}, v{r}")
        g("s_nop 1")
        g(f"v_permlane32_swap_b32 v{r}, v{t}")
        g(f"{op} v{r}, v{r}, v{t}")

    schA, schB = schedule(DA), schedule(DB)
    assert schA[2] < schB[2] and schA[2] >= 4
    main = NAME + "_kernel"
    g.raw(HEADER.rstrip("\n"))
    g.raw(f"; @launch grid=(256,1,1) block=(320,1,1) lds={LDS}")
    g.raw(DOC.rstrip("\n"))
    g.raw('.amdgcn_target "amdgcn-amd-amdhsa--gfx950"')
    g.raw(".text")
    g.raw(f".globl {main}")
    g.raw(".p2align 8")
    g.raw(f".type {main},@function")
    g.lab(main)
    g("s_load_dwordx16 s[4:19], s[0:1], 0", "q k v table len out debug ws")
    stamp(0)
    g(f"v_readfirstlane_b32 s{sW}, v0")
    g("s_cmp_ge_u32 s2, 0x100")
    g("s_cbranch_scc1 L_end", "workgroups past the grid")
    g(f"v_and_b32 v{vT2}, 63, v0", "lane")
    g(f"s_and_b32 s{sH}, s2, 7")
    g(f"s_xor_b32 s{sH}, s{sH}, {hxor}", "kv head")
    g(f"s_lshr_b32 s{sJ}, s2, 3", "slice j")
    g(f"s_lshr_b32 s{sW}, s{sW}, 6", "wave")
    g(f"s_lshl_b32 s{sT1}, s{sH}, 8")
    g(f"s_cmp_eq_u32 s{sW}, 4")
    if cpf:
        g("s_cbranch_scc0 L_prod")
        if cpf < 32:
            g(f"s_cmp_lt_u32 s{sJ}, {cpf}")
            g("s_cbranch_scc0 L_helper")
        g("s_getpc_b64 s[66:67]")
        g.lab("L_pc")
        g(f"v_lshlrev_b32 v1, 7, v{vT2}")
        g(f"v_cmp_gt_u32 vcc, L_code_end-L_pc, v1")
        g("s_and_b64 exec, exec, vcc")
        g("global_load_dword v66, v1, s[66:67]", "pull the rest of the code into this die's L2")
        g("s_mov_b64 exec, -1")
        g("s_branch L_helper")
        g.lab("L_prod")
    else:
        g("s_cbranch_scc1 L_helper")
    g(f"s_lshl_b32 s{sU}, s{sW}, 5")
    g(f"s_add_u32 s{sU}, s{sU}, s{sJ}", "first logical block of this wave (then +128 each)")
    g(f"s_lshl_b32 s{sT0}, s{sU}, 2")
    g(f"v_lshrrev_b32 v{vX}, 4, v{vT2}", "g = lane>>4")
    g(f"v_and_b32 v{vX+1}, 3, v{vT2}", "c = lane&3")
    g(f"v_lshlrev_b32 v{vX+2}, 4, v{vX+1}")
    g(f"v_lshl_add_u32 v{vX+2}, v{vX}, 6, v{vX+2}", "16-byte chunk 4g+c of a row")
    g(f"v_bfe_u32 v{vX+3}, v{vT2}, 2, 2", "t = (lane>>2)&3")
    g(f"v_lshl_add_u32 v{vK0}, v{vX+3}, 13, v{vX+2}", "K: token 4t (+ load index)")
    g(f"v_add_u32 v{vK1}, 0x1000, v{vK0}")
    g(f"v_lshl_add_u32 v{vT1}, v{vX+3}, 8, v{vX+2}", "Q: head t")
    g(f"s_sub_u32 s{srdI[2]+2}, {hex(KV_BYTES)}, s{sT1}")
    g(f"s_mov_b32 s{srdI[2]+3}, 0x20000")
    g("s_waitcnt lgkmcnt(0)")
    g(f"s_add_u32 s10, s10, s{sT0}")
    g("s_addc_u32 s11, s11, 0")
    g(f"s_load_dword s{sOf[1]}, s[10:11], 0", "first two blocks")
    g(f"s_load_dword s{sOf[2]}, s[10:11], 512")
    g(f"s_load_dword s{sCL}, s[12:13], 0")
    g(f"s_lshl2_add_u32 s4, s{sT1}, s4")
    g("s_addc_u32 s5, s5, 0")
    g(f"global_load_dwordx4 v[{vQ}:{vQ+3}], v{vT1}, s[4:5]")
    g(f"s_add_u32 s{srdI[2]}, s6, s{sT1}")
    g(f"s_addc_u32 s{srdI[2]+1}, s7, 0")
    g("s_waitcnt lgkmcnt(0)")
    g(f"s_lshl_b32 s{sOf[1]}, s{sOf[1]}, 15")
    g(f"s_lshl_b32 s{sOf[2]}, s{sOf[2]}, 15")
    def pro(i):
        ld(i // 4, i % 4, vK0 if (i & 2) == 0 else vK1, srdI[2], sOf[1 + i // 4])
    for i in range(schA[2]):
        pro(i)
    stamp(1)
    g(f"s_bitcmp1_b32 {hex(bmask)}, s{sH}")
    g("s_cbranch_scc0 L_noextra")
    for i in range(schA[2], schB[2]):
        pro(i)
    g.lab("L_noextra")
    epoch_load()
    g(f"s_mov_b64 s[{sKb}:{sKb+1}], s[{srdI[2]}:{srdI[2]+1}]")
    g(f"s_add_u32 s{sVb}, s8, s{sT1}")
    g(f"s_addc_u32 s{sVb+1}, s9, 0")
    g(f"s_mov_b32 s{srdI[1]+2}, s{srdI[2]+2}")
    g(f"s_mov_b32 s{srdI[1]+3}, 0x20000")
    g(f"s_mov_b64 s[{sMk[2]}:{sMk[2]+1}], 0")
    ws_srd()
    g(f"v_and_b32 v{vX+4}, 15, v{vT2}")
    g(f"v_lshlrev_b32 v{vX+4}, 4, v{vX+4}")
    g(f"v_lshl_add_u32 v{vV0}, v{vX}, 13, v{vX+4}", "V: token 4g (+ load index), chunk lane&15")
    g(f"v_add_u32 v{vV1}, 0x1000, v{vV0}")
    g(f"v_lshl_add_u32 v{vPo}, v{vX}, 10, v{vX+4}", "publish offset q*1024 + x*16")
    g(f"s_lshl_b32 s{sPub}, s{sH}, 5")
    g(f"s_add_u32 s{sPub}, s{sPub}, s{sJ}")
    g(f"s_lshl4_add_u32 s{sPub}, s{sPub}, s{sW}")
    g(f"s_lshl_b32 s{sPub}, s{sPub}, 8", "(h*32+j)*4096 + w*256")
    g(f"s_lshl_b32 s{sT0}, s{sW}, 13")
    g(f"v_lshl_add_u32 v{vAw}, v{vT2}, 4, s{sT0}", "LDS: accumulator dump")
    g(f"v_lshl_add_u32 v{vSa}, v{vT2}, 2, s{sT0}", "LDS: score slot")
    g.cm("cross-wave sum: lane (q, 4nn+2hf+rr) reads byte hf*1024 + q*256 + w*64 + nn*16 + rr*8 of every dump")
    g(f"v_lshlrev_b32 v{vOr}, 4, v{vX+3}")
    g(f"v_lshl_add_u32 v{vOr}, v{vX}, 8, v{vOr}")
    g(f"v_bfe_u32 v{vX+5}, v{vT2}, 1, 1")
    g(f"v_lshl_add_u32 v{vOr}, v{vX+5}, 10, v{vOr}")
    g(f"v_and_b32 v{vX+5}, 1, v{vT2}")
    g(f"v_lshl_add_u32 v{vOr}, v{vX+5}, 3, v{vOr}")
    g(f"s_lshl_b32 s{sT0}, s{sW}, 6")
    g(f"v_add_u32 v{vOr}, s{sT0}, v{vOr}")
    g(f"v_lshlrev_b32 v{vFr}, 2, v{vX}")
    g.cm("finishing role: the waves of slices 24..31 each own 16 outputs of the head")
    g(f"s_sub_i32 s{sSl}, s{sJ}, 24")
    g(f"s_lshl2_add_u32 s{sSl}, s{sSl}, s{sW}")
    g(f"s_lshl_b32 s{sT0}, s{sH}, 17")
    g(f"s_lshl_b32 s{sT2}, s{sSl}, 7")
    g(f"s_add_u32 s{sO[0]}, s{sT0}, s{sT2}")
    for i in range(1, 4):
        g(f"s_add_u32 s{sO[i]}, s{sO[0]}, {hex(4096*i)}")
    g(f"s_lshl_b32 s{sOut}, s{sH}, 10")
    g(f"s_lshl_b32 s{sT0}, s{sSl}, 5")
    g(f"s_add_u32 s{sOut}, s{sOut}, s{sT0}")
    g(f"s_mov_b32 s{srdO}, s14", "descriptor of d_out")
    g(f"s_mov_b32 s{srdO+1}, s15")
    g(f"s_mov_b32 s{srdO+2}, 0x2000")
    g(f"s_mov_b32 s{srdO+3}, 0x20000")
    g(f"v_and_b32 v{vCout}, 7, v{vT2}")
    g(f"v_lshrrev_b32 v{vCo}, 3, v{vT2}")
    g(f"v_lshlrev_b32 v{vCo}, 14, v{vCo}")
    g(f"v_lshl_add_u32 v{vCo}, v{vCout}, 4, v{vCo}")
    g(f"v_lshlrev_b32 v{vCout}, 2, v{vCout}")
    g(f"s_bfe_u32 s{sT0}, s{sSl}, 0x20003")
    g(f"s_lshl_b32 s{sT0}, s{sT0}, 2")
    g(f"v_mov_b32 v{vCw}, s{sT0}")
    g(f"v_lshlrev_b32 v{vMLr}, 5, v{vX+3}")
    g(f"s_lshl_b32 s{sT0}, s{sW}, 3")
    g(f"v_add_u32 v{vMLw}, s{sT0}, v{vMLr}")
    g(f"v_lshl_add_u32 v{vTok}, v{vX}, 2, v{vX+1}", "token of this lane's score: 4g + c")
    g(f"v_mov_b32 v{vSc}, {f32(128 ** -0.5 * LOG2E)}", "log2(e)/sqrt(128)")
    g(f"v_mov_b32 v{vNEG}, 0xff800000")
    g(f"v_mov_b32 v{vM}, {f32(-1e30)}")
    g(f"v_mov_b32 v{vL}, 0")
    for r in range(8):
        g(f"v_mov_b32 v{vA0+r}, 0")
    for x in range(3):
        m32 = hex(0x11111111 << (x + 1))
        g(f"s_mov_b32 s{sQm[x]}, {m32}")
        g(f"s_mov_b32 s{sQm[x]+1}, {m32}")
    g(f"v_lshlrev_b32 v{vX+5}, 4, v{vX+5}")
    g(f"v_mov_b32 v{vX+6}, 0xffff")
    g(f"v_lshlrev_b32 v{vX+6}, v{vX+5}, v{vX+6}")
    g(f"v_cmp_gt_u32 vcc, 2, v{vX+1}")
    g(f"v_min_u32 v{vT0}, 40, v{vT2}")
    g(f"s_mov_b32 s{sS}, 0")
    g(f"v_cndmask_b32 v{vMsk0}, 0, v{vX+6}, vcc", "P operand masks: half-word c of a 4 x bf16 group")
    g(f"v_xor_b32 v{vMsk1}, v{vMsk0}, v{vX+6}")
    clamp_cl()
    g(f"s_add_u32 s{sN}, s{sCL}, 15")
    g(f"s_lshr_b32 s{sN}, s{sN}, 4")
    g(f"s_add_u32 s{sN}, s{sN}, 127")
    g(f"s_sub_u32 s{sN}, s{sN}, s{sU}")
    g(f"s_lshr_b32 s{sN}, s{sN}, 7", "blocks of this wave")
    g(f"s_max_u32 s{sN}, s{sN}, 2", "the two already requested are walked (masked if past the end)")
    pk = sum(int(c, 16) << (4 * i) for i, c in enumerate(rtab))
    g(f"s_getreg_b32 s{sBo}, hwreg(HW_REG_XCC_ID, 0, 3)")
    g(f"s_lshl_b32 s{sBo}, s{sBo}, 2")
    g(f"s_lshr_b32 s{sBo}, {hex(pk)}, s{sBo}")
    g(f"s_and_b32 s{sBo}, s{sBo}, 15")
    g(f"s_sub_i32 s{sBo}, s{sN}, s{sBo}", "late-starting dies take their last blocks with more loads in flight")
    g(f"s_lshl_b32 s{sT0}, s{sU}, 4")
    g(f"s_sub_i32 s{sRem}, s{sCL}, s{sT0}", "tokens left at this wave's block 0")
    g(f"s_lshl_b32 s{sT0}, s{sW}, 2")
    g(f"v_lshl_add_u32 v{vT0}, v{vT0}, 4, s{sT0}")
    g("s_barrier", "helper's block list is in LDS")
    g(f"ds_read_b32 v{vBT}, v{vT0} offset:{LLO}", "lane i = byte offset of this wave's block i")
    g("s_waitcnt lgkmcnt(0)")
    g(f"s_bitcmp1_b32 {hex(bmask)}, s{sH}")
    g("s_cbranch_scc1 L_k0B")

    D = lambda m, r=0: vD + 4 * m + r
    def phases(sch, sfx):
        issue, wait, _ = sch
        used = sorted({(du, pos >> 1) for p in issue for du, pos in issue[p]})
        dus = sorted({du for du, _ in used})
        for half in (0, 1):
            g.lab(f"L_k{half}{sfx}", "phase 1: one K block; the load stream runs on into V")
            g(f"s_add_u32 s{sT0}, s{sS}, 2")
            g(f"s_mov_b32 s{sOf[1]}, s{sOf[2]}")
            if 1 in dus:
                g(f"s_mov_b64 s[{srdI[1]}:{srdI[1]+1}], s[{srdI[2]}:{srdI[2]+1}]")
                g(f"s_mov_b64 s[{sMk[1]}:{sMk[1]+1}], s[{sMk[2]}:{sMk[2]+1}]")
            g(f"s_cmp_ge_u32 s{sT0}, s{sN}")
            g(f"s_cselect_b32 s{sT1}, s{sN}, 0")
            g(f"s_cselect_b64 s[{srdI[2]}:{srdI[2]+1}], s[{sVb}:{sVb+1}], s[{sKb}:{sKb+1}]")
            g(f"s_cselect_b64 s[{sMk[2]}:{sMk[2]+1}], -1, 0")
            g(f"s_sub_u32 s{sT0}, s{sT0}, s{sT1}")
            g(f"v_readlane_b32 s{sOf[2]}, v{vBT}, s{sT0}")
            for du, o in used:
                g(f"v_cndmask_b32 v{vI[(du, o)]}, v{vK0 + o}, v{vV0 + o}, s[{sMk[du]}:{sMk[du]+1}]")
            g(f"v_cmp_gt_i32 vcc, s{sRem}, v{vTok}")
            g(f"s_add_u32 s{sS}, s{sS}, 1")
            g(f"s_sub_i32 s{sRem}, s{sRem}, 0x800")
            for p in range(4):
                r = vR + 16 * half + 4 * p
                g(f"s_waitcnt vmcnt({wait[p]})")
                g(f"v_mfma_f32_16x16x32_bf16 v[{D(p)}:{D(p,3)}], v[{r}:{r+3}], v[{vQ}:{vQ+3}], 0")
                for du, pos in issue[p]:
                    ld((half + du) & 1, pos, vI[(du, pos >> 1)], srdI[du], sOf[du])
            g(f"s_nop {4 - len(issue[3])}")
            for r in range(4):
                for m in range(4):
                    op = "v_mul_f32_dpp" if r == 0 else "v_fmac_f32_dpp"
                    g(f"{op} v{D(m)}, v{D(m,r)}, v{vSc} quad_perm:[{r},{r},{r},{r}] row_mask:0xf bank_mask:0xf")
            g(f"v_cndmask_b32 v{vS}, v{D(0)}, v{D(1)}, s[{sQm[0]}:{sQm[0]+1}]")
            g(f"v_cndmask_b32 v{vS}, v{vS}, v{D(2)}, s[{sQm[1]}:{sQm[1]+1}]")
            g(f"v_cndmask_b32 v{vS}, v{vS}, v{D(3)}, s[{sQm[2]}:{sQm[2]+1}]")
            g(f"v_cndmask_b32 v{vS}, v{vNEG}, v{vS}, vcc", "positions past context_len")
            g(f"ds_write_b32 v{vSa}, v{vS}")
            g(f"v_max_f32 v{vT0}, v{vM}, v{vS}")
            g(f"v_sub_f32 v{vT1}, v{vM}, v{vT0}")
            g(f"v_sub_f32 v{vT2}, v{vS}, v{vT0}")
            g(f"v_exp_f32 v{vT1}, v{vT1}")
            g(f"v_exp_f32 v{vT2}, v{vT2}")
            g(f"v_mov_b32 v{vM}, v{vT0}")
            g(f"v_add_u32 v{vSa}, 0x100, v{vSa}")
            g(f"v_fma_f32 v{vL}, v{vL}, v{vT1}, v{vT2}")
            g(f"s_cmp_lt_u32 s{sS}, s{sN}")
            g(f"s_cbranch_scc0 L_mid{sfx}" if half == 0 else f"s_cbranch_scc1 L_k0{sfx}")
        g.lab(f"L_mid{sfx}", "wave max and sum per head, then the workgroup max")
        def allred(op, r, t):
            g(f"{op}_dpp v{r}, v{r}, v{r} quad_perm:[1,0,3,2] row_mask:0xf bank_mask:0xf")
            g("s_nop 1")
            g(f"{op}_dpp v{r}, v{r}, v{r} quad_perm:[2,3,0,1] row_mask:0xf bank_mask:0xf")
            swaps(op, r, t)
        stamp(5)
        g(f"s_lshl_b32 s{sT0}, s{sN}, 8")
        g(f"v_subrev_u32 v{vSa}, s{sT0}, v{vSa}")
        allred("v_max_f32", vM, vT1)
        g(f"v_sub_f32 v{vT0}, v{vT0}, v{vM}")
        g(f"v_exp_f32 v{vT0}, v{vT0}")
        g(f"ds_read_b32 v{vSn}, v{vSa}")
        g(f"v_mul_f32 v{vL}, v{vL}, v{vT0}")
        g("s_nop 1")
        allred("v_add_f32", vL, vT1)
        g("s_mov_b64 exec, 0x1111")
        g(f"ds_write_b64 v{vMLw}, v[{vM}:{vL}] offset:{MLO}")
        g("s_mov_b64 exec, -1")
        g("s_waitcnt lgkmcnt(0)")
        g("s_barrier")
        g(f"ds_read_b128 v[{vX}:{vX+3}], v{vMLr} offset:{MLO}")
        g(f"ds_read_b128 v[{vX+4}:{vX+7}], v{vMLr} offset:{MLO+16}")
        make_tag()
        g(f"v_mov_b32 v{vP+2}, s{sTag}")
        g(f"v_mov_b32 v{vP+3}, s{sTag+1}")
        g(f"s_mov_b32 s{sS}, 0")
        g("s_waitcnt lgkmcnt(0)")
        g(f"v_max3_f32 v{vM}, v{vX}, v{vX+2}, v{vX+4}")
        g(f"v_max_f32 v{vM}, v{vM}, v{vX+6}")
        g(f"s_bitcmp1_b32 s{sN}, 0")
        g(f"s_cbranch_scc1 L_v1{sfx}")
        for half in (0, 1):
            g.lab(f"L_v{half}{sfx}", "phase 2: one V block")
            if sfx == "A":
                g(f"s_cmp_lt_i32 s{sS}, s{sBo}")
                g(f"s_cbranch_scc1 L_nb{half}")
                for i in range(schA[2], schB[2]):
                    ld((half + 1) & 1, i % 4, vV0 + ((i % 4) >> 1), srdI[2], sOf[2])
                g(f"s_branch L_v{half}B")
                g.lab(f"L_nb{half}")
            g(f"s_add_u32 s{sT0}, s{sS}, 2")
            g(f"s_mov_b32 s{sOf[1]}, s{sOf[2]}")
            g(f"v_readlane_b32 s{sOf[2]}, v{vBT}, s{sT0}")
            g("s_waitcnt lgkmcnt(0)")
            g(f"v_sub_f32 v{vS}, v{vSn}, v{vM}")
            g(f"v_exp_f32 v{vS}, v{vS}")
            g(f"ds_read_b32 v{vSn}, v{vSa} offset:256")
            g(f"v_cvt_pk_bf16_f32 v{vS}, v{vS}, v{vS}")
            g(f"v_add_u32 v{vSa}, 0x100, v{vSa}")
            g(f"s_add_u32 s{sS}, s{sS}, 1")
            for m in range(4):
                g(f"v_and_b32_dpp v{D(m)}, v{vS}, v{vMsk0} quad_perm:[{m},{m},{m},{m}] row_mask:0xf bank_mask:0xf")
                g(f"v_and_b32_dpp v{D(m,1)}, v{vS}, v{vMsk1} quad_perm:[{m},{m},{m},{m}] row_mask:0xf bank_mask:0xf")
            g(f"s_cmp_lt_u32 s{sS}, s{sN}")
            for p in range(4):
                r = vR + 16 * half + 4 * p
                g(f"s_waitcnt vmcnt({wait[p]})")
                g(f"v_mfma_f32_16x16x16_bf16 v[{vA0}:{vA0+3}], v[{D(p)}:{D(p,1)}], v[{r}:{r+1}], v[{vA0}:{vA0+3}]")
                g(f"v_mfma_f32_16x16x16_bf16 v[{vA1}:{vA1+3}], v[{D(p)}:{D(p,1)}], v[{r+2}:{r+3}], v[{vA1}:{vA1+3}]")
                if p == 3:
                    g("s_cbranch_scc0 L_fin")
                for du, pos in issue[p]:
                    ld((half + du) & 1, pos, vV0 + (pos >> 1), srdI[2], sOf[du])
            if half == 1:
                g(f"s_branch L_v0{sfx}")
    phases(schA, "A")
    phases(schB, "B")

    g.lab("L_fin", "sum the four waves, scale, publish")
    g("s_nop 6")
    stamp(3)
    g(f"ds_write_b128 v{vAw}, v[{vA0}:{vA0+3}]")
    g(f"ds_write_b128 v{vAw}, v[{vA1}:{vA1+3}] offset:1024")
    g("s_waitcnt lgkmcnt(0)")
    g("s_barrier", "also holds until the helper has left its factors and ended")
    g(f"ds_read_b32 v{vT2}, v{vCw} offset:{FLO+32}")
    for w in range(4):
        g(f"ds_read_b64 v[{vX+2*w}:{vX+2*w+1}], v{vOr} offset:{8192*w}")
    g(f"ds_read_b32 v{vT0}, v{vFr} offset:{FLO}")
    g(f"ds_read_b32 v{vT1}, v{vCw} offset:{FLO+16}")
    g("s_waitcnt lgkmcnt(4)")
    g(f"v_cmp_ne_u32 vcc, 0, v{vT2}")
    g(f"v_pk_add_f32 v[{vX}:{vX+1}], v[{vX}:{vX+1}], v[{vX+2}:{vX+3}]")
    g("s_waitcnt lgkmcnt(2)")
    g(f"v_pk_add_f32 v[{vX+4}:{vX+5}], v[{vX+4}:{vX+5}], v[{vX+6}:{vX+7}]")
    g(f"v_pk_add_f32 v[{vX}:{vX+1}], v[{vX}:{vX+1}], v[{vX+4}:{vX+5}]")
    g("s_waitcnt lgkmcnt(0)")
    g(f"v_mul_f32 v{vP}, v{vX}, v{vT0}")
    g(f"v_mul_f32 v{vP+1}, v{vX+1}, v{vT0}")
    g("s_cbranch_vccz L_far")
    g(f"buffer_store_dwordx4 v[{vP}:{vP+3}], v{vPo}, s[{srdW}:{srdW+3}], s{sPub} offen", "readers share this L2")
    g.lab("L_pubd")
    stamp(2)
    g(f"s_cmp_lt_u32 s{sJ}, 24")
    if stamps:
        g("s_cbranch_scc0 L_cons")
        g("s_waitcnt vmcnt(0)")
        g("s_branch L_pdump")
        g.lab("L_cons")
    else:
        g("s_cbranch_scc1 L_end")
    cO = vR
    g(f"v_readfirstlane_b32 s{sT0}, v{vT1}")
    g("v_mov_b32 v16, 0")
    g("v_mov_b32 v17, 0")
    for i in range(4):
        g(f"s_mov_b64 s[{sPm[i]}:{sPm[i]+1}], -1")
    g(f"s_mov_b32 s{sCnt}, 0")
    g(f"s_cmp_lg_u32 s{sT0}, 0")
    g("s_cbranch_scc1 L_slow")
    g.lab("L_poll", "gather one 128-byte line from each of the 32 partials; only missing lanes are asked again")
    for i in range(4):
        g(f"s_mov_b64 exec, s[{sPm[i]}:{sPm[i]+1}]")
        g(f"s_cbranch_execz L_sk{i}")
        g(f"buffer_load_dwordx4 v[{cO+4*i}:{cO+4*i+3}], v{vCo}, s[{srdW}:{srdW+3}], s{sO[i]} offen sc1")
        g.lab(f"L_sk{i}")
    g("s_mov_b64 exec, -1")
    g(f"s_add_u32 s{sCnt}, s{sCnt}, 1")
    g("s_waitcnt vmcnt(0)")
    for i in range(4):
        g(f"v_cmp_ne_u64 s[{sPm[i]}:{sPm[i]+1}], s[{sTag}:{sTag+1}], v[{cO+4*i+2}:{cO+4*i+3}]")
    g(f"v_pk_add_f32 v[18:19], v[{cO}:{cO+1}], v[{cO+4}:{cO+5}]")
    g(f"v_pk_add_f32 v[20:21], v[{cO+8}:{cO+9}], v[{cO+12}:{cO+13}]")
    g("v_pk_add_f32 v[18:19], v[18:19], v[16:17]")
    g(f"s_cmp_ge_u32 s{sCnt}, {hex(SPIN * 2)}")
    g("v_pk_add_f32 v[18:19], v[18:19], v[20:21]")
    g("s_cbranch_scc1 L_got")
    g(f"s_or_b64 s[{sPm[4]}:{sPm[4]+1}], s[{sPm[0]}:{sPm[0]+1}], s[{sPm[1]}:{sPm[1]+1}]")
    g(f"s_or_b64 s[{sPm[4]}:{sPm[4]+1}], s[{sPm[4]}:{sPm[4]+1}], s[{sPm[2]}:{sPm[2]+1}]")
    g(f"s_or_b64 s[{sPm[4]}:{sPm[4]+1}], s[{sPm[4]}:{sPm[4]+1}], s[{sPm[3]}:{sPm[3]+1}]")
    g("s_cbranch_scc1 L_poll")
    g.lab("L_got")
    g("s_nop 0")
    g("v_permlane32_swap_b32 v18, v19")
    g("v_add_f32 v18, v18, v19")
    g("v_mov_b32 v19, v18")
    g("s_nop 1")
    g("v_permlane16_swap_b32 v18, v19")
    g("v_add_f32 v18, v18, v19")
    g("s_nop 1")
    g("v_add_f32_dpp v18, v18, v18 row_ror:8 row_mask:0xf bank_mask:0xf")
    g("v_mov_b32 v19, v18")
    g("s_nop 1")
    g("v_permlane32_swap_b32 v18, v19")
    g("v_cvt_pk_bf16_f32 v18, v18, v19")
    g("s_mov_b64 exec, 0xff")
    g(f"buffer_store_dword v18, v{vCout}, s[{srdO}:{srdO+3}], s{sOut} offen")
    g(f"s_cmp_eq_u32 s{sSl}, 0")
    g("s_cbranch_scc0 L_pdump" if stamps else "s_cbranch_scc0 L_end")
    g("s_mov_b64 exec, 1")
    g("v_mov_b32 v14, 0")
    g(f"global_store_dwordx2 v14, v[{vP+2}:{vP+3}], s[{sEp}:{sEp+1}]", "every reader of the old epoch has published by now")
    if stamps:
        g.lab("L_pdump")
        stamp(4)
        dump_stamps()
    g.lab("L_end")
    g("s_endpgm")
    g.lab("L_far")
    g(f"buffer_store_dwordx4 v[{vP}:{vP+3}], v{vPo}, s[{srdW}:{srdW+3}], s{sPub} offen sc1")
    g("s_branch L_pubd")

    sB, sPh, sTok = 39, 40, 41
    srdVv = srdI[2]
    g.lab("L_slow", "masked positions carry weight (no score above the mask value): add their V as the reference does")
    g("v_and_b32 v22, 63, v0")
    g("v_lshrrev_b32 v23, 3, v22")
    g(f"s_and_b32 s{sT1}, s{sSl}, 7")
    g(f"s_lshl_b32 s{sT1}, s{sT1}, 5")
    g(f"v_lshl_add_u32 v24, v23, 11, v{vCout}")
    g(f"v_add_u32 v24, s{sT1}, v24")
    g("v_add_u32 v25, 0x4000, v24")
    g("v_add_u32 v26, 8, v23")
    g(f"s_lshr_b32 s{sB}, s{sCL}, 4")
    g(f"s_lshl_b32 s{sT1}, s{sU}, 2")
    g(f"s_sub_u32 s10, s10, s{sT1}")
    g("s_subb_u32 s11, s11, 0")
    g.lab("L_slow_loop")
    g(f"s_cmp_lt_u32 s{sB}, 0x1000")
    g("s_cbranch_scc0 L_slow_end")
    g(f"s_lshl_b32 s{sT1}, s{sB}, 2")
    g(f"s_load_dword s{sPh}, s[10:11], s{sT1}")
    g(f"s_lshl_b32 s{sTok}, s{sB}, 4")
    g(f"s_sub_i32 s{sTok}, s{sCL}, s{sTok}")
    g("s_waitcnt lgkmcnt(0)")
    g(f"s_lshl_b32 s{sPh}, s{sPh}, 15")
    g(f"buffer_load_dword v27, v24, s[{srdVv}:{srdVv+3}], s{sPh} offen")
    g(f"buffer_load_dword v28, v25, s[{srdVv}:{srdVv+3}], s{sPh} offen")
    g(f"v_cmp_le_i32 vcc, s{sTok}, v23")
    g(f"v_cmp_le_i32 s[76:77], s{sTok}, v26")
    g("s_waitcnt vmcnt(0)")
    g("v_cndmask_b32 v27, 0, v27, vcc")
    g("v_cndmask_b32 v28, 0, v28, s[76:77]")
    g("v_lshlrev_b32 v29, 16, v27")
    g("v_and_b32 v27, 0xffff0000, v27")
    g("v_add_f32 v16, v16, v29")
    g("v_add_f32 v17, v17, v27")
    g("v_lshlrev_b32 v29, 16, v28")
    g("v_and_b32 v28, 0xffff0000, v28")
    g("v_add_f32 v16, v16, v29")
    g("v_add_f32 v17, v17, v28")
    g(f"s_add_u32 s{sB}, s{sB}, 1")
    g("s_branch L_slow_loop")
    g.lab("L_slow_end")
    g(f"v_mul_f32 v16, s{sT0}, v16")
    g(f"v_mul_f32 v17, s{sT0}, v17")
    g("s_branch L_poll")

    vLane = vT2
    hML, hG = 32, 40
    hOffML, hLf, hLml, hOffPub, hOffX = 2, 4, 6, 7, 44
    sMLr, sMLw, sNb, sBk, sX = 39, 40, 46, 48, 47
    g.raw(".p2align 6")
    g.lab("L_helper")
    g(f"s_lshl_b32 s{sT2}, s{sJ}, 2")
    g(f"v_lshl_add_u32 v20, v{vLane}, 7, s{sT2}", "table entries j + 32*lane, j + 32*(lane+64)")
    g("v_add_u32 v21, 0x2000, v20")
    g(f"s_lshl_b32 s{sT0}, s{sH}, 5")
    g(f"s_add_u32 s{sT0}, s{sT0}, s{sJ}")
    g(f"s_lshl_b32 s{sT0}, s{sT0}, 12")
    g(f"v_lshlrev_b32 v12, 6, v{vLane}")
    g(f"s_and_b32 s{sT2}, s{sJ}, 7")
    g(f"s_lshl3_add_u32 s{sT2}, s{sH}, s{sT2}")
    g(f"s_lshl_b32 s{sT2}, s{sT2}, 7")
    g(f"v_add_u32 v13, s{sT2}, v12")
    g("v_mov_b32 v16, 0")
    g("s_waitcnt lgkmcnt(0)")
    g("global_load_dword v22, v20, s[10:11]")
    g("global_load_dword v23, v21, s[10:11]")
    g(f"s_load_dword s{sCL}, s[12:13], 0")
    ws_srd()
    g.cm("memory is idle now: pull in the lines that will be written at the end (values unused)")
    g(f"buffer_load_dword v64, v12, s[{srdW}:{srdW+3}], s{sT0} offen sc1")
    g("s_mov_b64 exec, 3")
    g("global_load_dword v65, v13, s[14:15] sc1")
    g("s_mov_b64 exec, -1")
    g(f"v_add_u32 v25, 64, v{vLane}")
    g(f"v_mov_b32 v24, v{vLane}")
    g("v_bfrev_b32 v28, 1", "0x80000000: an offset past the buffer, loads return 0")
    g(f"v_lshlrev_b32 v29, 2, v{vLane}")
    g("v_mov_b32 v18, 1")
    g(f"ds_write_b32 v29, v28 offset:{LLO+512}")
    g(f"ds_write_b32 v29, v16 offset:{CLO}")
    g("s_waitcnt lgkmcnt(0)")
    clamp_cl()
    g(f"s_add_u32 s{sNb}, s{sCL}, 15")
    g(f"s_lshr_b32 s{sNb}, s{sNb}, 4")
    g(f"s_add_u32 s{sNb}, s{sNb}, 31")
    g(f"s_sub_u32 s{sNb}, s{sNb}, s{sJ}")
    g(f"s_lshr_b32 s{sNb}, s{sNb}, 5", "blocks of this workgroup")
    g(f"s_sub_i32 s{sBk}, s{sNb}, 1")
    g(f"v_cmp_gt_i32 s[26:27], s{sBk}, v24", "movable: not the last (it may be partial) ...")
    g(f"v_cmp_gt_i32 s[28:29], s{sBk}, v25")
    g(f"v_cmp_gt_i32 s[30:31], s{sNb}, v24")
    g(f"v_cmp_gt_i32 s[34:35], s{sNb}, v25")
    g("s_andn2_b32 s26, s26, 0xff", "... and not the eight already requested")
    g("s_waitcnt vmcnt(2)")
    g.cm("counting sort by physical block id / 64")
    for r in (0, 1):
        g(f"v_lshrrev_b32 v{26+r}, 6, v{22+r}")
        g(f"v_min_u32 v{26+r}, 63, v{26+r}")
        g(f"v_lshlrev_b32 v{26+r}, 2, v{26+r}")
        g(f"s_mov_b64 exec, s[{26+2*r}:{27+2*r}]")
        g(f"ds_add_rtn_u32 v{20+r}, v{26+r}, v18 offset:{CLO}")
        g("s_mov_b64 exec, -1")
    g(f"ds_read_b32 v19, v29 offset:{CLO}")
    for r in (0, 1):
        g(f"v_lshlrev_b32 v{22+r}, 15, v{22+r}")
        g(f"v_cndmask_b32 v{22+r}, v28, v{22+r}, s[{30+4*r}:{31+4*r}]")
    g("s_waitcnt lgkmcnt(0)")
    g("v_sub_u32 v14, 8, v19")
    g("s_nop 0")
    for sh in (1, 2, 4, 8):
        g(f"v_add_u32_dpp v19, v19, v19 row_shr:{sh} row_mask:0xf bank_mask:0xf bound_ctrl:0")
        g("s_nop 1")
    g("v_add_u32_dpp v19, v19, v19 row_bcast:15 row_mask:0xa bank_mask:0xf")
    g("s_nop 1")
    g("v_add_u32_dpp v19, v19, v19 row_bcast:31 row_mask:0xc bank_mask:0xf")
    g("v_add_u32 v19, v19, v14", "first position of each bucket")
    g(f"ds_write_b32 v29, v19 offset:{CLO}")
    g(f"ds_read_b32 v14, v26 offset:{CLO}")
    g(f"ds_read_b32 v15, v27 offset:{CLO}")
    g("s_waitcnt lgkmcnt(0)")
    g("v_add_u32 v14, v14, v20")
    g("v_add_u32 v15, v15, v21")
    g("v_cndmask_b32 v24, v24, v14, s[26:27]")
    g("v_cndmask_b32 v25, v25, v15, s[28:29]")
    g("v_lshlrev_b32 v24, 2, v24")
    g("v_lshlrev_b32 v25, 2, v25")
    g(f"ds_write_b32 v24, v22 offset:{LLO}")
    g(f"ds_write_b32 v25, v23 offset:{LLO}")
    g("s_waitcnt lgkmcnt(0)")
    stamp(2)
    g("s_barrier")
    epoch_load()
    g(f"v_lshlrev_b32 v{hOffPub}, 4, v{vLane}")
    g(f"v_and_b32 v14, 3, v{vLane}", "q = lane&3")
    g(f"v_lshlrev_b32 v{hLml}, 5, v14")
    g(f"v_lshlrev_b32 v{hLf}, 2, v14")
    g(f"v_lshrrev_b32 v15, 2, v{vLane}")
    g("v_lshlrev_b32 v14, 4, v14")
    g(f"v_lshl_add_u32 v{hOffML}, v15, 7, v14")
    g(f"v_and_b32 v{hOffX}, 31, v{vLane}")
    g(f"v_lshlrev_b32 v{hOffX}, 7, v{hOffX}")
    g(f"s_lshl_b32 s{sT2}, s{sJ}, 7")
    g(f"s_lshl_b32 s{sMLr}, s{sH}, 12")
    g(f"s_add_u32 s{sMLr}, s{sMLr}, {hex(ML_BASE)}")
    g(f"s_add_u32 s{sMLw}, s{sMLr}, s{sT2}")
    g(f"s_getreg_b32 s{sX}, hwreg(HW_REG_XCC_ID)")
    g("s_waitcnt lgkmcnt(0)")
    make_tag()
    g(f"v_mov_b32 v{hG+2}, s{sTag}")
    g(f"v_mov_b32 v{hG+3}, s{sTag+1}")
    g("s_barrier", "the four waves have finished phase 1")
    g(f"ds_read_b128 v[20:23], v{hLml} offset:{MLO}")
    g(f"ds_read_b128 v[24:27], v{hLml} offset:{MLO+16}")
    g("s_waitcnt lgkmcnt(0)")
    g("v_max3_f32 v12, v20, v22, v24")
    g(f"v_max_f32 v{hG}, v12, v26")
    for w in range(4):
        g(f"v_sub_f32 v{20+2*w}, v{20+2*w}, v{hG}")
    for w in range(4):
        g(f"v_exp_f32 v{20+2*w}, v{20+2*w}")
    g(f"v_mul_f32 v{hG+1}, v20, v21")
    for w in range(1, 4):
        g(f"v_fmac_f32 v{hG+1}, v{20+2*w}, v{21+2*w}")
    g("s_mov_b64 exec, 0xf0")
    g(f"v_mov_b32 v{hG+1}, s{sX}", "granules 0-3: {M, L} per q head, 4-7: XCC id")
    g("s_mov_b64 exec, 0xff")
    g(f"buffer_store_dwordx4 v[{hG}:{hG+3}], v{hOffPub}, s[{srdW}:{srdW+3}], s{sMLw} offen sc1")
    g("s_mov_b64 exec, -1")
    g(f"s_mov_b32 s{sCnt}, 0")
    g.lab("L_pml", "wait for the 32 lines of this head (few polls: they share the memory pipe with the V stream)")
    g(f"s_sleep {mls}")
    g(f"buffer_load_dwordx4 v[{hML}:{hML+3}], v{hOffML}, s[{srdW}:{srdW+3}], s{sMLr} offen sc1")
    g(f"buffer_load_dwordx4 v[{hML+4}:{hML+7}], v{hOffML}, s[{srdW}:{srdW+3}], s{sMLr} offen offset:2048 sc1")
    g(f"buffer_load_dwordx4 v[48:51], v{hOffX}, s[{srdW}:{srdW+3}], s{sMLr} offen offset:64 sc1")
    g(f"s_add_u32 s{sCnt}, s{sCnt}, 1")
    g("s_waitcnt vmcnt(0)")
    g(f"v_cmp_ne_u64 s[{sPm[0]}:{sPm[0]+1}], s[{sTag}:{sTag+1}], v[{hML+2}:{hML+3}]")
    g(f"v_cmp_ne_u64 s[{sPm[1]}:{sPm[1]+1}], s[{sTag}:{sTag+1}], v[{hML+6}:{hML+7}]")
    g(f"v_cmp_ne_u64 s[{sPm[2]}:{sPm[2]+1}], s[{sTag}:{sTag+1}], v[50:51]")
    g(f"s_cmp_ge_u32 s{sCnt}, {hex(SPIN // 4)}")
    g("s_cbranch_scc1 L_gotml")
    g(f"s_or_b64 s[{sPm[0]}:{sPm[0]+1}], s[{sPm[0]}:{sPm[0]+1}], s[{sPm[1]}:{sPm[1]+1}]")
    g(f"s_or_b64 s[{sPm[0]}:{sPm[0]+1}], s[{sPm[0]}:{sPm[0]+1}], s[{sPm[2]}:{sPm[2]+1}]")
    g("s_cbranch_scc1 L_pml")
    g.lab("L_gotml")
    stamp(1)
    def allred_pl(op, r, t):
        g("s_nop 1")
        g(f"{op}_dpp v{r}, v{r}, v{r} row_ror:4 row_mask:0xf bank_mask:0xf")
        g("s_nop 1")
        g(f"{op}_dpp v{r}, v{r}, v{r} row_ror:8 row_mask:0xf bank_mask:0xf")
        swaps(op, r, t)
    g(f"v_cmp_ne_u32 vcc, s{sX}, v49")
    g("s_cmp_eq_u64 vcc, 0")
    g(f"s_cselect_b32 s{sBk}, 1, 0", "all 32 workgroups of this head sit behind one L2")
    g(f"v_mov_b32 v50, s{sBk}")
    g.cm("masked positions score bf16(-1e9): they join the max and the sum whenever there are any")
    g(f"s_sub_u32 s{sT2}, 0x10000, s{sCL}")
    g(f"s_cmp_eq_u32 s{sT2}, 0")
    g(f"s_mov_b32 s{sT0}, {f32(SM2)}")
    g(f"s_cmov_b32 s{sT0}, 0xff800000")
    g(f"v_max3_f32 v12, v{hML}, v{hML+4}, s{sT0}")
    allred_pl("v_max_f32", 12, 13)
    g(f"v_sub_f32 v14, v{hML}, v12")
    g(f"v_sub_f32 v15, v{hML+4}, v12")
    g(f"v_sub_f32 v18, s{sT0}, v12")
    g(f"v_sub_f32 v19, v{hG}, v12")
    g("v_exp_f32 v14, v14")
    g("v_exp_f32 v15, v15")
    g("v_exp_f32 v18, v18")
    g("v_exp_f32 v19, v19")
    g(f"v_cvt_f32_u32 v20, s{sT2}")
    g(f"v_mul_f32 v14, v14, v{hML+1}")
    g(f"v_fmac_f32 v14, v15, v{hML+5}")
    allred_pl("v_add_f32", 14, 13)
    g("v_fmac_f32 v14, v18, v20", "softmax denominator")
    g("v_rcp_f32 v14, v14")
    g("s_mov_b64 exec, 0xf")
    g("v_mul_f32 v19, v19, v14")
    g("v_mul_f32 v18, v18, v14")
    g(f"ds_write_b32 v{hLf}, v19 offset:{FLO}")
    g(f"ds_write_b32 v{hLf}, v18 offset:{FLO+16}")
    g(f"ds_write_b32 v{hLf}, v50 offset:{FLO+32}")
    g("s_waitcnt lgkmcnt(0)")
    if stamps:
        for i in range(3, 6):
            stamp(i)
        dump_stamps()
    g.lab("L_code_end")
    g("s_endpgm")
    g.raw('.section .rodata,"a"')
    g.raw(".p2align 6")
    g.raw(kd(main, NV, NS))
    return g.text()

if __name__ == "__main__":
    import argparse
    ap = argparse.ArgumentParser()
    ap.add_argument("-o", default=f"cdna_kernels/{NAME}.s")
    ap.add_argument("--da", default="5656")
    ap.add_argument("--db", default="8888")
    ap.add_argument("--hxor", type=int, default=3)
    ap.add_argument("--rtab", default="00002203")
    ap.add_argument("--mls", type=int, default=64)
    ap.add_argument("--stamps", action="store_true")
    ap.add_argument("--cpf", type=int, default=0)
    a = ap.parse_args()
    open(a.o, "w").write(gen(DA=tuple(map(int, a.da)), DB=tuple(map(int, a.db)), hxor=a.hxor, rtab=a.rtab, mls=a.mls, stamps=a.stamps, cpf=a.cpf))
```

```python
import struct, math

NAME = "standalone__paged_block_table_kv_pagedattention__decode"
KV_BYTES = 4100 * 32768
WS_BYTES = 537395200
ML_BASE = 1 << 20
EP_BASE = ML_BASE + 0x8000
STAMP_BASE = 2 << 20
INC_LO, INC_HI = 0x7F4A7C15, 0x9E3779B9
SPIN = 0x200000
LOG2E = math.log2(math.e)
SM2 = -998244352.0 * LOG2E

def f32(x):
    return "0x%08x" % struct.unpack("<I", struct.pack("<f", x))[0]

HEADER = """; Kernarg layout for this problem (64 bytes, ptrs only, base s[0:1]):
"""

DOC = """; Split-KV decode attention in one launch.  256 workgroups = 8 kv heads x 32 slices of the context
;   middle   workgroup max; the helper trades {max, sum} with the other 31 workgroups of the head and
; Hand-offs are 16-byte granules {data, data, tag64}; tag = epoch word found in d_ws + constant, stored back at
"""

class G:
    def __init__(s):
        s.L = []
    def __call__(s, t, c=None):
        s.L.append("    " + t + (("" if c is None else " " * max(1, 62 - len(t)) + "; " + c)))
    def lab(s, t, c=None):
        s.L.append(t + ":" + ("" if c is None else "   ; " + c))
    def raw(s, t):
        s.L.append(t)
    def cm(s, t):
        s.L.append("    ; " + t)
    def text(s):
        return "\n".join(s.L) + "\n"

def kd(name, vgpr, sgpr):
    acc = (vgpr + 3) // 4 * 4
    return f""".amdhsa_kernel {name}
  .amdhsa_next_free_vgpr {vgpr}
  .amdhsa_next_free_sgpr {sgpr}
  .amdhsa_accum_offset {acc}
  .amdhsa_group_segment_fixed_size 0
  .amdhsa_kernarg_size 64
  .amdhsa_user_sgpr_count 2
  .amdhsa_user_sgpr_kernarg_segment_ptr 1
  .amdhsa_system_sgpr_workgroup_id_x 1
.end_amdhsa_kernel
"""

def schedule(dist):
    issue = {p: [] for p in range(4)}
    for i in range(40, 44):
        c = i - dist[i % 4]
        issue[c % 4].append((i // 4 - c // 4, i % 4))
    t = [i - dist[i % 4] for i in range(80)]
    assert all(t[i] <= t[i + 1] for i in range(79))
    for p in issue:
        issue[p].sort()
    wait = {p: max(i for i in range(80) if t[i] < 40 + p) - (40 + p) for p in range(4)}
    npro = sum(1 for i in range(80) if t[i] < 0)
    assert all(1 <= du <= 2 for p in issue for du, _ in issue[p]) and max(dist) <= 8
    return issue, wait, npro

def gen(DA=(5,6,5,6), DB=(8,8,8,8), bmask=0x22, hxor=3, rtab="00002203", mls=64, stamps=False, cpf=0, early=False, enc=None, tlb=False):
    g = G()
    MLO = 32768
    FLO = MLO + 128
    LLO = FLO + 128
    CLO = LLO + 768
    LDS = CLO + 256
    vK0, vK1, vV0, vV1 = 1, 2, 3, 4
    vMLw, vBT, vMLr = 5, 6, 7
    vQ = 8
    vA0, vA1 = 12, 16
    vM, vL, vSc, vTok = 20, 21, 22, 23
    vMsk0, vMsk1, vS, vSn = 24, 25, 26, 27
    vT0, vT1, vT2, vNEG = 28, 29, 30, 31
    vD = 32
    vI = {(1, 0): 48, (1, 1): 49, (2, 0): 50, (2, 1): 51}
    vP = 52
    vAw, vOr, vPo, vSa, vFr = 56, 57, 58, 59, 60
    vCo, vCout, vCw = 61, 62, 63
    vR = 64
    vX = 96
    NV = 104
    sW, sH, sJ, sU = 3, 36, 37, 38
    sS, sN, sRem, sT0, sT1, sT2 = 39, 40, 41, 42, 43, 44
    sCL = 45
    sOf = {1: 46, 2: 47}
    srdI = {1: 48, 2: 52}
    srdW = 56
    sPub = 62
    sKb, sVb = 26, 28
    sMk = {1: 30, 2: 32}
    sQm = [34, 60, 76]
    sE, sEp, sTag = 20, 22, 24
    sSt = 80
    sSl, sOut, sCnt, sBo = 64, 63, 33, 65
    sO = [68, 69, 70, 71]
    srdO = 72
    sPm = [26, 28, 30, 34, 60]
    NS = 96 if stamps else 78
    def stamp(i):
        if stamps:
            g(f"s_memrealtime s[{sSt + 2*i}:{sSt + 2*i + 1}]")
    def dump_stamps(helper=False):
        if not stamps:
            return
        if enc is not None:
            if helper:
                return
            g("s_waitcnt lgkmcnt(0)")
            g(f"s_sub_u32 s{sT1}, s{sSt+2*enc}, s{sSt}")
            g(f"s_mul_i32 s{sT1}, s{sT1}, 20")
            g(f"s_add_u32 s{sT0}, s{sSt}, 4000")
            g(f"s_add_u32 s{sT0}, s{sT0}, s{sT1}")
            g.lab("L_enc")
            g("s_sleep 1")
            g(f"s_memrealtime s[{sSt+12}:{sSt+13}]")
            g("s_waitcnt lgkmcnt(0)")
            g(f"s_sub_u32 s{sT1}, s{sSt+12}, s{sT0}")
            g(f"s_cmp_lt_i32 s{sT1}, 0")
            g("s_cbranch_scc1 L_enc")
            return
        g("s_mov_b64 exec, 1")
        g("s_waitcnt lgkmcnt(0)")
        g(f"s_and_b32 s{sT0}, s{sJ}, 7")
        g(f"s_lshl3_add_u32 s{sT0}, s{sH}, s{sT0}")
        g(f"s_lshr_b32 s{sT1}, s{sJ}, 3")
        g(f"s_lshl_b32 s{sT1}, s{sT1}, 6")
        g(f"s_add_u32 s{sT0}, s{sT0}, s{sT1}")
        g(f"s_mul_i32 s{sT0}, s{sT0}, 5")
        g(f"s_add_u32 s{sT0}, s{sT0}, s{sW}")
        g(f"s_lshl_b32 s{sT0}, s{sT0}, 6")
        g(f"s_add_u32 s{sT0}, s{sT0}, {hex(STAMP_BASE)}")
        g("v_mov_b32 v5, 0")
        for i in range(6):
            g(f"v_mov_b32 v{32+i}, s{sSt+2*i}")
        g(f"s_getreg_b32 s{sT1}, hwreg(HW_REG_XCC_ID)")
        g(f"v_mov_b32 v{32+6}, s{sT1}")
        g(f"s_getreg_b32 s{sT1}, hwreg(HW_REG_HW_ID)")
        g(f"v_mov_b32 v{32+7}, s{sT1}")
        g(f"buffer_store_dwordx4 v[32:35], v5, s[{srdW}:{srdW+3}], s{sT0} offen")
        g(f"buffer_store_dwordx4 v[36:39], v5, s[{srdW}:{srdW+3}], s{sT0} offen offset:16")
    def ws_srd():
        g(f"s_mov_b32 s{srdW}, s18", "descriptor of d_ws")
        g(f"s_mov_b32 s{srdW+1}, s19")
        g(f"s_mov_b32 s{srdW+2}, {hex(WS_BYTES)}")
        g(f"s_mov_b32 s{srdW+3}, 0x20000")
    def epoch_load():
        g(f"s_lshl_b32 s{sEp}, s{sH}, 7")
        g(f"s_add_u32 s{sEp}, s{sEp}, {hex(EP_BASE)}")
        g(f"s_add_u32 s{sEp}, s18, s{sEp}")
        g(f"s_addc_u32 s{sEp+1}, s19, 0")
        g(f"s_load_dwordx2 s[{sE}:{sE+1}], s[{sEp}:{sEp+1}], 0", "epoch word of this head")
    def make_tag():
        g(f"s_add_u32 s{sTag}, s{sE}, {hex(INC_LO)}", "this launch's tag")
        g(f"s_addc_u32 s{sTag+1}, s{sE+1}, {hex(INC_HI)}")
    def clamp_cl():
        g(f"s_max_i32 s{sCL}, s{sCL}, 0")
        g(f"s_min_i32 s{sCL}, s{sCL}, 0x10000")
    def ld(half, pos, vo, srd, so):
        r = vR + 16 * half + 4 * pos
        off = " offset:2048" if (pos & 1) else ""
        g(f"buffer_load_dwordx4 v[{r}:{r+3}], v{vo}, s[{srd}:{srd+3}], s{so} offen{off} nt")
    def swaps(op, r, t):
        g(f"v_mov_b32 v{t}, v{r}")
        g("s_nop 1")
        g(f"v_permlane16_swap_b32 v{r}, v{t}")
        g(f"{op} v{r}, v{r}, v{t}")
        g(f"v_mov_b32 v{t}, v{r}")
        g("s_nop 1")
        g(f"v_permlane32_swap_b32 v{r}, v{t}")
        g(f"{op} v{r}, v{r}, v{t}")

    schA, schB = schedule(DA), schedule(DB)
    assert schA[2] < schB[2] and schA[2] >= 4
    main = NAME + "_kernel"
    g.raw(HEADER.rstrip("\n"))
    g.raw(f"; @launch grid=(256,1,1) block=(320,1,1) lds={LDS}")
    g.raw(DOC.rstrip("\n"))
    g.raw('.amdgcn_target "amdgcn-amd-amdhsa--gfx950"')
    g.raw(".text")
    g.raw(f".globl {main}")
    g.raw(".p2align 8")
    g.raw(f".type {main},@function")
    g.lab(main)
    if not early:
        g("s_load_dwordx16 s[4:19], s[0:1], 0", "q k v table len out debug ws")
        stamp(0)
        g(f"v_readfirstlane_b32 s{sW}, v0")
        g("s_cmp_ge_u32 s2, 0x100")
        g("s_cbranch_scc1 L_end", "workgroups past the grid")
        g(f"v_and_b32 v{vT2}, 63, v0", "lane")
        g(f"s_and_b32 s{sH}, s2, 7")
        g(f"s_xor_b32 s{sH}, s{sH}, {hxor}", "kv head")
        g(f"s_lshr_b32 s{sJ}, s2, 3", "slice j")
        g(f"s_lshr_b32 s{sW}, s{sW}, 6", "wave")
        g(f"s_lshl_b32 s{sT1}, s{sH}, 8")
        g(f"s_cmp_eq_u32 s{sW}, 4")
        if cpf:
            g("s_cbranch_scc0 L_prod")
            if cpf < 32:
                g(f"s_cmp_lt_u32 s{sJ}, {cpf}")
                g("s_cbranch_scc0 L_helper")
            g("s_getpc_b64 s[66:67]")
            g.lab("L_pc")
            g(f"v_lshlrev_b32 v1, 7, v{vT2}")
            g(f"v_cmp_gt_u32 vcc, L_code_end-L_pc, v1")
            g("s_and_b64 exec, exec, vcc")
            g("global_load_dword v66, v1, s[66:67]", "pull the rest of the code into this die's L2")
            g("s_mov_b64 exec, -1")
            g("s_branch L_helper")
            g.lab("L_prod")
        else:
            g("s_cbranch_scc1 L_helper")
        g(f"s_lshl_b32 s{sU}, s{sW}, 5")
        g(f"s_add_u32 s{sU}, s{sU}, s{sJ}", "first logical block of this wave (then +128 each)")
        g(f"s_lshl_b32 s{sT0}, s{sU}, 2")
        g(f"v_lshrrev_b32 v{vX}, 4, v{vT2}", "g = lane>>4")
        g(f"v_and_b32 v{vX+1}, 3, v{vT2}", "c = lane&3")
        g(f"v_lshlrev_b32 v{vX+2}, 4, v{vX+1}")
        g(f"v_lshl_add_u32 v{vX+2}, v{vX}, 6, v{vX+2}", "16-byte chunk 4g+c of a row")
        g(f"v_bfe_u32 v{vX+3}, v{vT2}, 2, 2", "t = (lane>>2)&3")
        g(f"v_lshl_add_u32 v{vK0}, v{vX+3}, 13, v{vX+2}", "K: token 4t (+ load index)")
        g(f"v_add_u32 v{vK1}, 0x1000, v{vK0}")
        g(f"v_lshl_add_u32 v{vT1}, v{vX+3}, 8, v{vX+2}", "Q: head t")
        g(f"s_sub_u32 s{srdI[2]+2}, {hex(KV_BYTES)}, s{sT1}")
        g(f"s_mov_b32 s{srdI[2]+3}, 0x20000")
        g("s_waitcnt lgkmcnt(0)")
        g(f"s_add_u32 s10, s10, s{sT0}")
        g("s_addc_u32 s11, s11, 0")
        g(f"s_load_dword s{sOf[1]}, s[10:11], 0", "first two blocks")
        g(f"s_load_dword s{sOf[2]}, s[10:11], 512")
        g(f"s_load_dword s{sCL}, s[12:13], 0")
        g(f"s_lshl2_add_u32 s4, s{sT1}, s4")
        g("s_addc_u32 s5, s5, 0")
        g(f"global_load_dwordx4 v[{vQ}:{vQ+3}], v{vT1}, s[4:5]")
        g(f"s_add_u32 s{srdI[2]}, s6, s{sT1}")
        g(f"s_addc_u32 s{srdI[2]+1}, s7, 0")
        g("s_waitcnt lgkmcnt(0)")
    else:
        g("s_load_dwordx16 s[4:19], s[0:1], 0", "q k v table len out debug ws")
        stamp(0)
        g("s_cmp_lt_u32 s2, 8")
        g("s_cbranch_scc0 L_go")
        g("s_getpc_b64 s[66:67]")
        g.lab("L_pc")
        g("v_lshlrev_b32 v1, 7, v0")
        g("v_cmp_gt_u32 vcc, L_code_end-L_pc, v1")
        g("s_and_b64 exec, exec, vcc")
        g("s_cbranch_execz L_pf")
        g(f"global_load_dword v{vX+7}, v1, s[66:67]", "one workgroup per die pulls the code into its L2")
        g.lab("L_pf")
        g("s_mov_b64 exec, -1")
        g.lab("L_go")
        g(f"v_readfirstlane_b32 s{sW}, v0")
        g(f"s_lshr_b32 s{sJ}, s2, 3", "slice j")
        g(f"s_cmp_ge_u32 s{sJ}, 32")
        g("s_cbranch_scc1 L_end", "workgroups past the grid")
        g(f"v_and_b32 v{vT2}, 63, v0", "lane")
        g(f"s_and_b32 s{sH}, s2, 7")
        g(f"s_xor_b32 s{sH}, s{sH}, {hxor}", "kv head")
        g(f"s_lshr_b32 s{sW}, s{sW}, 6", "wave")
        g(f"s_lshl_b32 s{sT1}, s{sH}, 8")
        g(f"s_cmp_eq_u32 s{sW}, 4")
        g("s_cbranch_scc1 L_helper")
        g(f"s_lshl_b32 s{sU}, s{sW}, 5")
        g(f"s_add_u32 s{sU}, s{sU}, s{sJ}", "first logical block of this wave (then +128 each)")
        g(f"s_lshl_b32 s{sT0}, s{sU}, 2")
        g(f"v_lshrrev_b32 v{vX}, 4, v{vT2}", "g = lane>>4")
        g(f"v_and_b32 v{vX+1}, 3, v{vT2}", "c = lane&3")
        g(f"v_lshlrev_b32 v{vX+2}, 4, v{vX+1}")
        g("s_waitcnt lgkmcnt(0)")
        g(f"s_add_u32 s10, s10, s{sT0}")
        g("s_addc_u32 s11, s11, 0")
        g(f"s_load_dword s{sOf[1]}, s[10:11], 0", "first two blocks")
        g(f"s_load_dword s{sOf[2]}, s[10:11], 512")
        g(f"s_load_dword s{sCL}, s[12:13], 0")
        g(f"v_lshl_add_u32 v{vX+2}, v{vX}, 6, v{vX+2}", "16-byte chunk 4g+c of a row")
        g(f"v_bfe_u32 v{vX+3}, v{vT2}, 2, 2", "t = (lane>>2)&3")
        g(f"v_lshl_add_u32 v{vT1}, v{vX+3}, 8, v{vX+2}", "Q: head t")
        g(f"s_lshl2_add_u32 s4, s{sT1}, s4")
        g("s_addc_u32 s5, s5, 0")
        g(f"global_load_dwordx4 v[{vQ}:{vQ+3}], v{vT1}, s[4:5]")
        g(f"v_lshl_add_u32 v{vK0}, v{vX+3}, 13, v{vX+2}", "K: token 4t (+ load index)")
        g(f"v_add_u32 v{vK1}, 0x1000, v{vK0}")
        g(f"s_sub_u32 s{srdI[2]+2}, {hex(KV_BYTES)}, s{sT1}")
        g(f"s_mov_b32 s{srdI[2]+3}, 0x20000")
        g(f"s_add_u32 s{srdI[2]}, s6, s{sT1}")
        g(f"s_addc_u32 s{srdI[2]+1}, s7, 0")
        g("s_waitcnt lgkmcnt(0)")
    g(f"s_lshl_b32 s{sOf[1]}, s{sOf[1]}, 15")
    g(f"s_lshl_b32 s{sOf[2]}, s{sOf[2]}, 15")
    def pro(i):
        ld(i // 4, i % 4, vK0 if (i & 2) == 0 else vK1, srdI[2], sOf[1 + i // 4])
    for i in range(schA[2]):
        pro(i)
    stamp(1)
    g(f"s_bitcmp1_b32 {hex(bmask)}, s{sH}")
    g("s_cbranch_scc0 L_noextra")
    for i in range(schA[2], schB[2]):
        pro(i)
    g.lab("L_noextra")
    epoch_load()
    g(f"s_mov_b64 s[{sKb}:{sKb+1}], s[{srdI[2]}:{srdI[2]+1}]")
    g(f"s_add_u32 s{sVb}, s8, s{sT1}")
    g(f"s_addc_u32 s{sVb+1}, s9, 0")
    g(f"s_mov_b32 s{srdI[1]+2}, s{srdI[2]+2}")
    g(f"s_mov_b32 s{srdI[1]+3}, 0x20000")
    g(f"s_mov_b64 s[{sMk[2]}:{sMk[2]+1}], 0")
    ws_srd()
    g(f"v_and_b32 v{vX+4}, 15, v{vT2}")
    g(f"v_lshlrev_b32 v{vX+4}, 4, v{vX+4}")
    g(f"v_lshl_add_u32 v{vV0}, v{vX}, 13, v{vX+4}", "V: token 4g (+ load index), chunk lane&15")
    g(f"v_add_u32 v{vV1}, 0x1000, v{vV0}")
    g(f"v_lshl_add_u32 v{vPo}, v{vX}, 10, v{vX+4}", "publish offset q*1024 + x*16")
    g(f"s_lshl_b32 s{sPub}, s{sH}, 5")
    g(f"s_add_u32 s{sPub}, s{sPub}, s{sJ}")
    g(f"s_lshl4_add_u32 s{sPub}, s{sPub}, s{sW}")
    g(f"s_lshl_b32 s{sPub}, s{sPub}, 8", "(h*32+j)*4096 + w*256")
    g(f"s_lshl_b32 s{sT0}, s{sW}, 13")
    g(f"v_lshl_add_u32 v{vAw}, v{vT2}, 4, s{sT0}", "LDS: accumulator dump")
    g(f"v_lshl_add_u32 v{vSa}, v{vT2}, 2, s{sT0}", "LDS: score slot")
    g.cm("cross-wave sum: lane (q, 4nn+2hf+rr) reads byte hf*1024 + q*256 + w*64 + nn*16 + rr*8 of every dump")
    g(f"v_lshlrev_b32 v{vOr}, 4, v{vX+3}")
    g(f"v_lshl_add_u32 v{vOr}, v{vX}, 8, v{vOr}")
    g(f"v_bfe_u32 v{vX+5}, v{vT2}, 1, 1")
    g(f"v_lshl_add_u32 v{vOr}, v{vX+5}, 10, v{vOr}")
    g(f"v_and_b32 v{vX+5}, 1, v{vT2}")
    g(f"v_lshl_add_u32 v{vOr}, v{vX+5}, 3, v{vOr}")
    g(f"s_lshl_b32 s{sT0}, s{sW}, 6")
    g(f"v_add_u32 v{vOr}, s{sT0}, v{vOr}")
    g(f"v_lshlrev_b32 v{vFr}, 2, v{vX}")
    g.cm("finishing role: the waves of slices 24..31 each own 16 outputs of the head")
    g(f"s_sub_i32 s{sSl}, s{sJ}, 24")
    g(f"s_lshl2_add_u32 s{sSl}, s{sSl}, s{sW}")
    g(f"s_lshl_b32 s{sT0}, s{sH}, 17")
    g(f"s_lshl_b32 s{sT2}, s{sSl}, 7")
    g(f"s_add_u32 s{sO[0]}, s{sT0}, s{sT2}")
    for i in range(1, 4):
        g(f"s_add_u32 s{sO[i]}, s{sO[0]}, {hex(4096*i)}")
    g(f"s_lshl_b32 s{sOut}, s{sH}, 10")
    g(f"s_lshl_b32 s{sT0}, s{sSl}, 5")
    g(f"s_add_u32 s{sOut}, s{sOut}, s{sT0}")
    g(f"s_mov_b32 s{srdO}, s14", "descriptor of d_out")
    g(f"s_mov_b32 s{srdO+1}, s15")
    g(f"s_mov_b32 s{srdO+2}, 0x2000")
    g(f"s_mov_b32 s{srdO+3}, 0x20000")
    g(f"v_and_b32 v{vCout}, 7, v{vT2}")
    g(f"v_lshrrev_b32 v{vCo}, 3, v{vT2}")
    g(f"v_lshlrev_b32 v{vCo}, 14, v{vCo}")
    g(f"v_lshl_add_u32 v{vCo}, v{vCout}, 4, v{vCo}")
    g(f"v_lshlrev_b32 v{vCout}, 2, v{vCout}")
    g(f"s_bfe_u32 s{sT0}, s{sSl}, 0x20003")
    g(f"s_lshl_b32 s{sT0}, s{sT0}, 2")
    g(f"v_mov_b32 v{vCw}, s{sT0}")
    g(f"v_lshlrev_b32 v{vMLr}, 5, v{vX+3}")
    g(f"s_lshl_b32 s{sT0}, s{sW}, 3")
    g(f"v_add_u32 v{vMLw}, s{sT0}, v{vMLr}")
    g(f"v_lshl_add_u32 v{vTok}, v{vX}, 2, v{vX+1}", "token of this lane's score: 4g + c")
    g(f"v_mov_b32 v{vSc}, {f32(128 ** -0.5 * LOG2E)}", "log2(e)/sqrt(128)")
    g(f"v_mov_b32 v{vNEG}, 0xff800000")
    g(f"v_mov_b32 v{vM}, {f32(-1e30)}")
    g(f"v_mov_b32 v{vL}, 0")
    for r in range(8):
        g(f"v_mov_b32 v{vA0+r}, 0")
    for x in range(3):
        m32 = hex(0x11111111 << (x + 1))
        g(f"s_mov_b32 s{sQm[x]}, {m32}")
        g(f"s_mov_b32 s{sQm[x]+1}, {m32}")
    g(f"v_lshlrev_b32 v{vX+5}, 4, v{vX+5}")
    g(f"v_mov_b32 v{vX+6}, 0xffff")
    g(f"v_lshlrev_b32 v{vX+6}, v{vX+5}, v{vX+6}")
    g(f"v_cmp_gt_u32 vcc, 2, v{vX+1}")
    g(f"v_min_u32 v{vT0}, 40, v{vT2}")
    g(f"s_mov_b32 s{sS}, 0")
    g(f"v_cndmask_b32 v{vMsk0}, 0, v{vX+6}, vcc", "P operand masks: half-word c of a 4 x bf16 group")
    g(f"v_xor_b32 v{vMsk1}, v{vMsk0}, v{vX+6}")
    clamp_cl()
    g(f"s_add_u32 s{sN}, s{sCL}, 15")
    g(f"s_lshr_b32 s{sN}, s{sN}, 4")
    g(f"s_add_u32 s{sN}, s{sN}, 127")
    g(f"s_sub_u32 s{sN}, s{sN}, s{sU}")
    g(f"s_lshr_b32 s{sN}, s{sN}, 7", "blocks of this wave")
    g(f"s_max_u32 s{sN}, s{sN}, 2", "the two already requested are walked (masked if past the end)")
    pk = sum(int(c, 16) << (4 * i) for i, c in enumerate(rtab))
    g(f"s_getreg_b32 s{sBo}, hwreg(HW_REG_XCC_ID, 0, 3)")
    g(f"s_lshl_b32 s{sBo}, s{sBo}, 2")
    g(f"s_lshr_b32 s{sBo}, {hex(pk)}, s{sBo}")
    g(f"s_and_b32 s{sBo}, s{sBo}, 15")
    g(f"s_sub_i32 s{sBo}, s{sN}, s{sBo}", "late-starting dies take their last blocks with more loads in flight")
    g(f"s_lshl_b32 s{sT0}, s{sU}, 4")
    g(f"s_sub_i32 s{sRem}, s{sCL}, s{sT0}", "tokens left at this wave's block 0")
    g(f"s_lshl_b32 s{sT0}, s{sW}, 2")
    g(f"v_lshl_add_u32 v{vT0}, v{vT0}, 4, s{sT0}")
    g("s_barrier", "helper's block list is in LDS")
    g(f"ds_read_b32 v{vBT}, v{vT0} offset:{LLO}", "lane i = byte offset of this wave's block i")
    g("s_waitcnt lgkmcnt(0)")
    g(f"s_bitcmp1_b32 {hex(bmask)}, s{sH}")
    g("s_cbranch_scc1 L_k0B")

    D = lambda m, r=0: vD + 4 * m + r
    def phases(sch, sfx):
        issue, wait, _ = sch
        used = sorted({(du, pos >> 1) for p in issue for du, pos in issue[p]})
        dus = sorted({du for du, _ in used})
        for half in (0, 1):
            g.lab(f"L_k{half}{sfx}", "phase 1: one K block; the load stream runs on into V")
            g(f"s_add_u32 s{sT0}, s{sS}, 2")
            g(f"s_mov_b32 s{sOf[1]}, s{sOf[2]}")
            if 1 in dus:
                g(f"s_mov_b64 s[{srdI[1]}:{srdI[1]+1}], s[{srdI[2]}:{srdI[2]+1}]")
                g(f"s_mov_b64 s[{sMk[1]}:{sMk[1]+1}], s[{sMk[2]}:{sMk[2]+1}]")
            g(f"s_cmp_ge_u32 s{sT0}, s{sN}")
            g(f"s_cselect_b32 s{sT1}, s{sN}, 0")
            g(f"s_cselect_b64 s[{srdI[2]}:{srdI[2]+1}], s[{sVb}:{sVb+1}], s[{sKb}:{sKb+1}]")
            g(f"s_cselect_b64 s[{sMk[2]}:{sMk[2]+1}], -1, 0")
            g(f"s_sub_u32 s{sT0}, s{sT0}, s{sT1}")
            g(f"v_readlane_b32 s{sOf[2]}, v{vBT}, s{sT0}")
            for du, o in used:
                g(f"v_cndmask_b32 v{vI[(du, o)]}, v{vK0 + o}, v{vV0 + o}, s[{sMk[du]}:{sMk[du]+1}]")
            g(f"v_cmp_gt_i32 vcc, s{sRem}, v{vTok}")
            g(f"s_add_u32 s{sS}, s{sS}, 1")
            g(f"s_sub_i32 s{sRem}, s{sRem}, 0x800")
            for p in range(4):
                r = vR + 16 * half + 4 * p
                g(f"s_waitcnt vmcnt({wait[p]})")
                g(f"v_mfma_f32_16x16x32_bf16 v[{D(p)}:{D(p,3)}], v[{r}:{r+3}], v[{vQ}:{vQ+3}], 0")
                for du, pos in issue[p]:
                    ld((half + du) & 1, pos, vI[(du, pos >> 1)], srdI[du], sOf[du])
            g(f"s_nop {4 - len(issue[3])}")
            for r in range(4):
                for m in range(4):
                    op = "v_mul_f32_dpp" if r == 0 else "v_fmac_f32_dpp"
                    g(f"{op} v{D(m)}, v{D(m,r)}, v{vSc} quad_perm:[{r},{r},{r},{r}] row_mask:0xf bank_mask:0xf")
            g(f"v_cndmask_b32 v{vS}, v{D(0)}, v{D(1)}, s[{sQm[0]}:{sQm[0]+1}]")
            g(f"v_cndmask_b32 v{vS}, v{vS}, v{D(2)}, s[{sQm[1]}:{sQm[1]+1}]")
            g(f"v_cndmask_b32 v{vS}, v{vS}, v{D(3)}, s[{sQm[2]}:{sQm[2]+1}]")
            g(f"v_cndmask_b32 v{vS}, v{vNEG}, v{vS}, vcc", "positions past context_len")
            g(f"ds_write_b32 v{vSa}, v{vS}")
            g(f"v_max_f32 v{vT0}, v{vM}, v{vS}")
            g(f"v_sub_f32 v{vT1}, v{vM}, v{vT0}")
            g(f"v_sub_f32 v{vT2}, v{vS}, v{vT0}")
            g(f"v_exp_f32 v{vT1}, v{vT1}")
            g(f"v_exp_f32 v{vT2}, v{vT2}")
            g(f"v_mov_b32 v{vM}, v{vT0}")
            g(f"v_add_u32 v{vSa}, 0x100, v{vSa}")
            g(f"v_fma_f32 v{vL}, v{vL}, v{vT1}, v{vT2}")
            g(f"s_cmp_lt_u32 s{sS}, s{sN}")
            g(f"s_cbranch_scc0 L_mid{sfx}" if half == 0 else f"s_cbranch_scc1 L_k0{sfx}")
        g.lab(f"L_mid{sfx}", "wave max and sum per head, then the workgroup max")
        def allred(op, r, t):
            g(f"{op}_dpp v{r}, v{r}, v{r} quad_perm:[1,0,3,2] row_mask:0xf bank_mask:0xf")
            g("s_nop 1")
            g(f"{op}_dpp v{r}, v{r}, v{r} quad_perm:[2,3,0,1] row_mask:0xf bank_mask:0xf")
            swaps(op, r, t)
        stamp(5)
        g(f"s_lshl_b32 s{sT0}, s{sN}, 8")
        g(f"v_subrev_u32 v{vSa}, s{sT0}, v{vSa}")
        allred("v_max_f32", vM, vT1)
        g(f"v_sub_f32 v{vT0}, v{vT0}, v{vM}")
        g(f"v_exp_f32 v{vT0}, v{vT0}")
        g(f"ds_read_b32 v{vSn}, v{vSa}")
        g(f"v_mul_f32 v{vL}, v{vL}, v{vT0}")
        g("s_nop 1")
        allred("v_add_f32", vL, vT1)
        g("s_mov_b64 exec, 0x1111")
        g(f"ds_write_b64 v{vMLw}, v[{vM}:{vL}] offset:{MLO}")
        g("s_mov_b64 exec, -1")
        g("s_waitcnt lgkmcnt(0)")
        g("s_barrier")
        g(f"ds_read_b128 v[{vX}:{vX+3}], v{vMLr} offset:{MLO}")
        g(f"ds_read_b128 v[{vX+4}:{vX+7}], v{vMLr} offset:{MLO+16}")
        make_tag()
        g(f"v_mov_b32 v{vP+2}, s{sTag}")
        g(f"v_mov_b32 v{vP+3}, s{sTag+1}")
        g(f"s_mov_b32 s{sS}, 0")
        g("s_waitcnt lgkmcnt(0)")
        g(f"v_max3_f32 v{vM}, v{vX}, v{vX+2}, v{vX+4}")
        g(f"v_max_f32 v{vM}, v{vM}, v{vX+6}")
        g(f"s_bitcmp1_b32 s{sN}, 0")
        g(f"s_cbranch_scc1 L_v1{sfx}")
        for half in (0, 1):
            g.lab(f"L_v{half}{sfx}", "phase 2: one V block")
            if sfx == "A":
                g(f"s_cmp_lt_i32 s{sS}, s{sBo}")
                g(f"s_cbranch_scc1 L_nb{half}")
                for i in range(schA[2], schB[2]):
                    ld((half + 1) & 1, i % 4, vV0 + ((i % 4) >> 1), srdI[2], sOf[2])
                g(f"s_branch L_v{half}B")
                g.lab(f"L_nb{half}")
            g(f"s_add_u32 s{sT0}, s{sS}, 2")
            g(f"s_mov_b32 s{sOf[1]}, s{sOf[2]}")
            g(f"v_readlane_b32 s{sOf[2]}, v{vBT}, s{sT0}")
            g("s_waitcnt lgkmcnt(0)")
            g(f"v_sub_f32 v{vS}, v{vSn}, v{vM}")
            g(f"v_exp_f32 v{vS}, v{vS}")
            g(f"ds_read_b32 v{vSn}, v{vSa} offset:256")
            g(f"v_cvt_pk_bf16_f32 v{vS}, v{vS}, v{vS}")
            g(f"v_add_u32 v{vSa}, 0x100, v{vSa}")
            g(f"s_add_u32 s{sS}, s{sS}, 1")
            for m in range(4):
                g(f"v_and_b32_dpp v{D(m)}, v{vS}, v{vMsk0} quad_perm:[{m},{m},{m},{m}] row_mask:0xf bank_mask:0xf")
                g(f"v_and_b32_dpp v{D(m,1)}, v{vS}, v{vMsk1} quad_perm:[{m},{m},{m},{m}] row_mask:0xf bank_mask:0xf")
            g(f"s_cmp_lt_u32 s{sS}, s{sN}")
            for p in range(4):
                r = vR + 16 * half + 4 * p
                g(f"s_waitcnt vmcnt({wait[p]})")
                g(f"v_mfma_f32_16x16x16_bf16 v[{vA0}:{vA0+3}], v[{D(p)}:{D(p,1)}], v[{r}:{r+1}], v[{vA0}:{vA0+3}]")
                g(f"v_mfma_f32_16x16x16_bf16 v[{vA1}:{vA1+3}], v[{D(p)}:{D(p,1)}], v[{r+2}:{r+3}], v[{vA1}:{vA1+3}]")
                if p == 3:
                    g("s_cbranch_scc0 L_fin")
                for du, pos in issue[p]:
                    ld((half + du) & 1, pos, vV0 + (pos >> 1), srdI[2], sOf[du])
            if half == 1:
                g(f"s_branch L_v0{sfx}")
    phases(schA, "A")
    phases(schB, "B")

    g.lab("L_fin", "sum the four waves, scale, publish")
    g("s_nop 6")
    stamp(3)
    g(f"ds_write_b128 v{vAw}, v[{vA0}:{vA0+3}]")
    g(f"ds_write_b128 v{vAw}, v[{vA1}:{vA1+3}] offset:1024")
    g("s_waitcnt lgkmcnt(0)")
    g("s_barrier", "also holds until the helper has left its factors and ended")
    g(f"ds_read_b32 v{vT2}, v{vCw} offset:{FLO+32}")
    for w in range(4):
        g(f"ds_read_b64 v[{vX+2*w}:{vX+2*w+1}], v{vOr} offset:{8192*w}")
    g(f"ds_read_b32 v{vT0}, v{vFr} offset:{FLO}")
    g(f"ds_read_b32 v{vT1}, v{vCw} offset:{FLO+16}")
    g("s_waitcnt lgkmcnt(4)")
    g(f"v_cmp_ne_u32 vcc, 0, v{vT2}")
    g(f"v_pk_add_f32 v[{vX}:{vX+1}], v[{vX}:{vX+1}], v[{vX+2}:{vX+3}]")
    g("s_waitcnt lgkmcnt(2)")
    g(f"v_pk_add_f32 v[{vX+4}:{vX+5}], v[{vX+4}:{vX+5}], v[{vX+6}:{vX+7}]")
    g(f"v_pk_add_f32 v[{vX}:{vX+1}], v[{vX}:{vX+1}], v[{vX+4}:{vX+5}]")
    g("s_waitcnt lgkmcnt(0)")
    g(f"v_mul_f32 v{vP}, v{vX}, v{vT0}")
    g(f"v_mul_f32 v{vP+1}, v{vX+1}, v{vT0}")
    g("s_cbranch_vccz L_far")
    g(f"buffer_store_dwordx4 v[{vP}:{vP+3}], v{vPo}, s[{srdW}:{srdW+3}], s{sPub} offen", "readers share this L2")
    g.lab("L_pubd")
    stamp(2)
    g(f"s_cmp_lt_u32 s{sJ}, 24")
    if stamps:
        g("s_cbranch_scc0 L_cons")
        g("s_waitcnt vmcnt(0)")
        g("s_branch L_pdump")
        g.lab("L_cons")
    else:
        g("s_cbranch_scc1 L_end")
    cO = vR
    g(f"v_readfirstlane_b32 s{sT0}, v{vT1}")
    g("v_mov_b32 v16, 0")
    g("v_mov_b32 v17, 0")
    for i in range(4):
        g(f"s_mov_b64 s[{sPm[i]}:{sPm[i]+1}], -1")
    g(f"s_mov_b32 s{sCnt}, 0")
    g(f"s_cmp_lg_u32 s{sT0}, 0")
    g("s_cbranch_scc1 L_slow")
    g.lab("L_poll", "gather one 128-byte line from each of the 32 partials; only missing lanes are asked again")
    for i in range(4):
        g(f"s_mov_b64 exec, s[{sPm[i]}:{sPm[i]+1}]")
        g(f"s_cbranch_execz L_sk{i}")
        g(f"buffer_load_dwordx4 v[{cO+4*i}:{cO+4*i+3}], v{vCo}, s[{srdW}:{srdW+3}], s{sO[i]} offen sc1")
        g.lab(f"L_sk{i}")
    g("s_mov_b64 exec, -1")
    g(f"s_add_u32 s{sCnt}, s{sCnt}, 1")
    g("s_waitcnt vmcnt(0)")
    for i in range(4):
        g(f"v_cmp_ne_u64 s[{sPm[i]}:{sPm[i]+1}], s[{sTag}:{sTag+1}], v[{cO+4*i+2}:{cO+4*i+3}]")
    g(f"v_pk_add_f32 v[18:19], v[{cO}:{cO+1}], v[{cO+4}:{cO+5}]")
    g(f"v_pk_add_f32 v[20:21], v[{cO+8}:{cO+9}], v[{cO+12}:{cO+13}]")
    g("v_pk_add_f32 v[18:19], v[18:19], v[16:17]")
    g(f"s_cmp_ge_u32 s{sCnt}, {hex(SPIN * 2)}")
    g("v_pk_add_f32 v[18:19], v[18:19], v[20:21]")
    g("s_cbranch_scc1 L_got")
    g(f"s_or_b64 s[{sPm[4]}:{sPm[4]+1}], s[{sPm[0]}:{sPm[0]+1}], s[{sPm[1]}:{sPm[1]+1}]")
    g(f"s_or_b64 s[{sPm[4]}:{sPm[4]+1}], s[{sPm[4]}:{sPm[4]+1}], s[{sPm[2]}:{sPm[2]+1}]")
    g(f"s_or_b64 s[{sPm[4]}:{sPm[4]+1}], s[{sPm[4]}:{sPm[4]+1}], s[{sPm[3]}:{sPm[3]+1}]")
    g("s_cbranch_scc1 L_poll")
    g.lab("L_got")
    g("s_nop 0")
    g("v_permlane32_swap_b32 v18, v19")
    g("v_add_f32 v18, v18, v19")
    g("v_mov_b32 v19, v18")
    g("s_nop 1")
    g("v_permlane16_swap_b32 v18, v19")
    g("v_add_f32 v18, v18, v19")
    g("s_nop 1")
    g("v_add_f32_dpp v18, v18, v18 row_ror:8 row_mask:0xf bank_mask:0xf")
    g("v_mov_b32 v19, v18")
    g("s_nop 1")
    g("v_permlane32_swap_b32 v18, v19")
    g("v_cvt_pk_bf16_f32 v18, v18, v19")
    g("s_mov_b64 exec, 0xff")
    g(f"buffer_store_dword v18, v{vCout}, s[{srdO}:{srdO+3}], s{sOut} offen")
    g(f"s_cmp_eq_u32 s{sSl}, 0")
    g("s_cbranch_scc0 L_pdump" if stamps else "s_cbranch_scc0 L_end")
    g("s_mov_b64 exec, 1")
    g("v_mov_b32 v14, 0")
    g(f"global_store_dwordx2 v14, v[{vP+2}:{vP+3}], s[{sEp}:{sEp+1}]", "every reader of the old epoch has published by now")
    if stamps:
        g.lab("L_pdump")
        stamp(4)
        dump_stamps()
    g.lab("L_end")
    g("s_endpgm")
    g.lab("L_far")
    g(f"buffer_store_dwordx4 v[{vP}:{vP+3}], v{vPo}, s[{srdW}:{srdW+3}], s{sPub} offen sc1")
    g("s_branch L_pubd")

    sB, sPh, sTok = 39, 40, 41
    srdVv = srdI[2]
    g.lab("L_slow", "masked positions carry weight (no score above the mask value): add their V as the reference does")
    g("v_and_b32 v22, 63, v0")
    g("v_lshrrev_b32 v23, 3, v22")
    g(f"s_and_b32 s{sT1}, s{sSl}, 7")
    g(f"s_lshl_b32 s{sT1}, s{sT1}, 5")
    g(f"v_lshl_add_u32 v24, v23, 11, v{vCout}")
    g(f"v_add_u32 v24, s{sT1}, v24")
    g("v_add_u32 v25, 0x4000, v24")
    g("v_add_u32 v26, 8, v23")
    g(f"s_lshr_b32 s{sB}, s{sCL}, 4")
    g(f"s_lshl_b32 s{sT1}, s{sU}, 2")
    g(f"s_sub_u32 s10, s10, s{sT1}")
    g("s_subb_u32 s11, s11, 0")
    g.lab("L_slow_loop")
    g(f"s_cmp_lt_u32 s{sB}, 0x1000")
    g("s_cbranch_scc0 L_slow_end")
    g(f"s_lshl_b32 s{sT1}, s{sB}, 2")
    g(f"s_load_dword s{sPh}, s[10:11], s{sT1}")
    g(f"s_lshl_b32 s{sTok}, s{sB}, 4")
    g(f"s_sub_i32 s{sTok}, s{sCL}, s{sTok}")
    g("s_waitcnt lgkmcnt(0)")
    g(f"s_lshl_b32 s{sPh}, s{sPh}, 15")
    g(f"buffer_load_dword v27, v24, s[{srdVv}:{srdVv+3}], s{sPh} offen")
    g(f"buffer_load_dword v28, v25, s[{srdVv}:{srdVv+3}], s{sPh} offen")
    g(f"v_cmp_le_i32 vcc, s{sTok}, v23")
    g(f"v_cmp_le_i32 s[76:77], s{sTok}, v26")
    g("s_waitcnt vmcnt(0)")
    g("v_cndmask_b32 v27, 0, v27, vcc")
    g("v_cndmask_b32 v28, 0, v28, s[76:77]")
    g("v_lshlrev_b32 v29, 16, v27")
    g("v_and_b32 v27, 0xffff0000, v27")
    g("v_add_f32 v16, v16, v29")
    g("v_add_f32 v17, v17, v27")
    g("v_lshlrev_b32 v29, 16, v28")
    g("v_and_b32 v28, 0xffff0000, v28")
    g("v_add_f32 v16, v16, v29")
    g("v_add_f32 v17, v17, v28")
    g(f"s_add_u32 s{sB}, s{sB}, 1")
    g("s_branch L_slow_loop")
    g.lab("L_slow_end")
    g(f"v_mul_f32 v16, s{sT0}, v16")
    g(f"v_mul_f32 v17, s{sT0}, v17")
    g("s_branch L_poll")

    vLane = vT2
    hML, hG = 32, 40
    hOffML, hLf, hLml, hOffPub, hOffX = 2, 4, 6, 7, 44
    sMLr, sMLw, sNb, sBk, sX = 39, 40, 46, 48, 47
    g.raw(".p2align 6")
    g.lab("L_helper")
    g(f"s_lshl_b32 s{sT2}, s{sJ}, 2")
    g(f"v_lshl_add_u32 v20, v{vLane}, 7, s{sT2}", "table entries j + 32*lane, j + 32*(lane+64)")
    g("v_add_u32 v21, 0x2000, v20")
    g(f"s_lshl_b32 s{sT0}, s{sH}, 5")
    g(f"s_add_u32 s{sT0}, s{sT0}, s{sJ}")
    g(f"s_lshl_b32 s{sT0}, s{sT0}, 12")
    g(f"v_lshlrev_b32 v12, 6, v{vLane}")
    g(f"s_and_b32 s{sT2}, s{sJ}, 7")
    g(f"s_lshl3_add_u32 s{sT2}, s{sH}, s{sT2}")
    g(f"s_lshl_b32 s{sT2}, s{sT2}, 7")
    g(f"v_add_u32 v13, s{sT2}, v12")
    g("v_mov_b32 v16, 0")
    if tlb:
        g(f"s_mul_i32 s50, s{sJ}, 0x401100")
        g(f"v_lshl_add_u32 v67, v{vLane}, 21, s50")
    g("s_waitcnt lgkmcnt(0)")
    if tlb:
        g("s_mov_b64 exec, 3")
        g("global_load_dword v68, v67, s[6:7]", "two 2 MB pages of K and of V per workgroup: address translations")
        g("global_load_dword v69, v67, s[8:9]")
        g("s_mov_b64 exec, -1")
    g("global_load_dword v22, v20, s[10:11]")
    g("global_load_dword v23, v21, s[10:11]")
    g(f"s_load_dword s{sCL}, s[12:13], 0")
    ws_srd()
    g.cm("memory is idle now: pull in the lines that will be written at the end (values unused)")
    g(f"buffer_load_dword v64, v12, s[{srdW}:{srdW+3}], s{sT0} offen sc1")
    g("s_mov_b64 exec, 3")
    g("global_load_dword v65, v13, s[14:15] sc1")
    g("s_mov_b64 exec, -1")
    g(f"v_add_u32 v25, 64, v{vLane}")
    g(f"v_mov_b32 v24, v{vLane}")
    g("v_bfrev_b32 v28, 1", "0x80000000: an offset past the buffer, loads return 0")
    g(f"v_lshlrev_b32 v29, 2, v{vLane}")
    g("v_mov_b32 v18, 1")
    g(f"ds_write_b32 v29, v28 offset:{LLO+512}")
    g(f"ds_write_b32 v29, v16 offset:{CLO}")
    g("s_waitcnt lgkmcnt(0)")
    clamp_cl()
    g(f"s_add_u32 s{sNb}, s{sCL}, 15")
    g(f"s_lshr_b32 s{sNb}, s{sNb}, 4")
    g(f"s_add_u32 s{sNb}, s{sNb}, 31")
    g(f"s_sub_u32 s{sNb}, s{sNb}, s{sJ}")
    g(f"s_lshr_b32 s{sNb}, s{sNb}, 5", "blocks of this workgroup")
    g(f"s_sub_i32 s{sBk}, s{sNb}, 1")
    g(f"v_cmp_gt_i32 s[26:27], s{sBk}, v24", "movable: not the last (it may be partial) ...")
    g(f"v_cmp_gt_i32 s[28:29], s{sBk}, v25")
    g(f"v_cmp_gt_i32 s[30:31], s{sNb}, v24")
    g(f"v_cmp_gt_i32 s[34:35], s{sNb}, v25")
    g("s_andn2_b32 s26, s26, 0xff", "... and not the eight already requested")
    g("s_waitcnt vmcnt(2)")
    g.cm("counting sort by physical block id / 64")
    for r in (0, 1):
        g(f"v_lshrrev_b32 v{26+r}, 6, v{22+r}")
        g(f"v_min_u32 v{26+r}, 63, v{26+r}")
        g(f"v_lshlrev_b32 v{26+r}, 2, v{26+r}")
        g(f"s_mov_b64 exec, s[{26+2*r}:{27+2*r}]")
        g(f"ds_add_rtn_u32 v{20+r}, v{26+r}, v18 offset:{CLO}")
        g("s_mov_b64 exec, -1")
    g(f"ds_read_b32 v19, v29 offset:{CLO}")
    for r in (0, 1):
        g(f"v_lshlrev_b32 v{22+r}, 15, v{22+r}")
        g(f"v_cndmask_b32 v{22+r}, v28, v{22+r}, s[{30+4*r}:{31+4*r}]")
    g("s_waitcnt lgkmcnt(0)")
    g("v_sub_u32 v14, 8, v19")
    g("s_nop 0")
    for sh in (1, 2, 4, 8):
        g(f"v_add_u32_dpp v19, v19, v19 row_shr:{sh} row_mask:0xf bank_mask:0xf bound_ctrl:0")
        g("s_nop 1")
    g("v_add_u32_dpp v19, v19, v19 row_bcast:15 row_mask:0xa bank_mask:0xf")
    g("s_nop 1")
    g("v_add_u32_dpp v19, v19, v19 row_bcast:31 row_mask:0xc bank_mask:0xf")
    g("v_add_u32 v19, v19, v14", "first position of each bucket")
    g(f"ds_write_b32 v29, v19 offset:{CLO}")
    g(f"ds_read_b32 v14, v26 offset:{CLO}")
    g(f"ds_read_b32 v15, v27 offset:{CLO}")
    g("s_waitcnt lgkmcnt(0)")
    g("v_add_u32 v14, v14, v20")
    g("v_add_u32 v15, v15, v21")
    g("v_cndmask_b32 v24, v24, v14, s[26:27]")
    g("v_cndmask_b32 v25, v25, v15, s[28:29]")
    g("v_lshlrev_b32 v24, 2, v24")
    g("v_lshlrev_b32 v25, 2, v25")
    g(f"ds_write_b32 v24, v22 offset:{LLO}")
    g(f"ds_write_b32 v25, v23 offset:{LLO}")
    g("s_waitcnt lgkmcnt(0)")
    stamp(2)
    g("s_barrier")
    epoch_load()
    g(f"v_lshlrev_b32 v{hOffPub}, 4, v{vLane}")
    g(f"v_and_b32 v14, 3, v{vLane}", "q = lane&3")
    g(f"v_lshlrev_b32 v{hLml}, 5, v14")
    g(f"v_lshlrev_b32 v{hLf}, 2, v14")
    g(f"v_lshrrev_b32 v15, 2, v{vLane}")
    g("v_lshlrev_b32 v14, 4, v14")
    g(f"v_lshl_add_u32 v{hOffML}, v15, 7, v14")
    g(f"v_and_b32 v{hOffX}, 31, v{vLane}")
    g(f"v_lshlrev_b32 v{hOffX}, 7, v{hOffX}")
    g(f"s_lshl_b32 s{sT2}, s{sJ}, 7")
    g(f"s_lshl_b32 s{sMLr}, s{sH}, 12")
    g(f"s_add_u32 s{sMLr}, s{sMLr}, {hex(ML_BASE)}")
    g(f"s_add_u32 s{sMLw}, s{sMLr}, s{sT2}")
    g(f"s_getreg_b32 s{sX}, hwreg(HW_REG_XCC_ID)")
    g("s_waitcnt lgkmcnt(0)")
    make_tag()
    g(f"v_mov_b32 v{hG+2}, s{sTag}")
    g(f"v_mov_b32 v{hG+3}, s{sTag+1}")
    g("s_barrier", "the four waves have finished phase 1")
    g(f"ds_read_b128 v[20:23], v{hLml} offset:{MLO}")
    g(f"ds_read_b128 v[24:27], v{hLml} offset:{MLO+16}")
    g("s_waitcnt lgkmcnt(0)")
    g("v_max3_f32 v12, v20, v22, v24")
    g(f"v_max_f32 v{hG}, v12, v26")
    for w in range(4):
        g(f"v_sub_f32 v{20+2*w}, v{20+2*w}, v{hG}")
    for w in range(4):
        g(f"v_exp_f32 v{20+2*w}, v{20+2*w}")
    g(f"v_mul_f32 v{hG+1}, v20, v21")
    for w in range(1, 4):
        g(f"v_fmac_f32 v{hG+1}, v{20+2*w}, v{21+2*w}")
    g("s_mov_b64 exec, 0xf0")
    g(f"v_mov_b32 v{hG+1}, s{sX}", "granules 0-3: {M, L} per q head, 4-7: XCC id")
    g("s_mov_b64 exec, 0xff")
    g(f"buffer_store_dwordx4 v[{hG}:{hG+3}], v{hOffPub}, s[{srdW}:{srdW+3}], s{sMLw} offen sc1")
    g("s_mov_b64 exec, -1")
    g(f"s_mov_b32 s{sCnt}, 0")
    g.lab("L_pml", "wait for the 32 lines of this head (few polls: they share the memory pipe with the V stream)")
    g(f"s_sleep {mls}")
    g(f"buffer_load_dwordx4 v[{hML}:{hML+3}], v{hOffML}, s[{srdW}:{srdW+3}], s{sMLr} offen sc1")
    g(f"buffer_load_dwordx4 v[{hML+4}:{hML+7}], v{hOffML}, s[{srdW}:{srdW+3}], s{sMLr} offen offset:2048 sc1")
    g(f"buffer_load_dwordx4 v[48:51], v{hOffX}, s[{srdW}:{srdW+3}], s{sMLr} offen offset:64 sc1")
    g(f"s_add_u32 s{sCnt}, s{sCnt}, 1")
    g("s_waitcnt vmcnt(0)")
    g(f"v_cmp_ne_u64 s[{sPm[0]}:{sPm[0]+1}], s[{sTag}:{sTag+1}], v[{hML+2}:{hML+3}]")
    g(f"v_cmp_ne_u64 s[{sPm[1]}:{sPm[1]+1}], s[{sTag}:{sTag+1}], v[{hML+6}:{hML+7}]")
    g(f"v_cmp_ne_u64 s[{sPm[2]}:{sPm[2]+1}], s[{sTag}:{sTag+1}], v[50:51]")
    g(f"s_cmp_ge_u32 s{sCnt}, {hex(SPIN // 4)}")
    g("s_cbranch_scc1 L_gotml")
    g(f"s_or_b64 s[{sPm[0]}:{sPm[0]+1}], s[{sPm[0]}:{sPm[0]+1}], s[{sPm[1]}:{sPm[1]+1}]")
    g(f"s_or_b64 s[{sPm[0]}:{sPm[0]+1}], s[{sPm[0]}:{sPm[0]+1}], s[{sPm[2]}:{sPm[2]+1}]")
    g("s_cbranch_scc1 L_pml")
    g.lab("L_gotml")
    stamp(1)
    def allred_pl(op, r, t):
        g("s_nop 1")
        g(f"{op}_dpp v{r}, v{r}, v{r} row_ror:4 row_mask:0xf bank_mask:0xf")
        g("s_nop 1")
        g(f"{op}_dpp v{r}, v{r}, v{r} row_ror:8 row_mask:0xf bank_mask:0xf")
        swaps(op, r, t)
    g(f"v_cmp_ne_u32 vcc, s{sX}, v49")
    g("s_cmp_eq_u64 vcc, 0")
    g(f"s_cselect_b32 s{sBk}, 1, 0", "all 32 workgroups of this head sit behind one L2")
    g(f"v_mov_b32 v50, s{sBk}")
    g.cm("masked positions score bf16(-1e9): they join the max and the sum whenever there are any")
    g(f"s_sub_u32 s{sT2}, 0x10000, s{sCL}")
    g(f"s_cmp_eq_u32 s{sT2}, 0")
    g(f"s_mov_b32 s{sT0}, {f32(SM2)}")
    g(f"s_cmov_b32 s{sT0}, 0xff800000")
    g(f"v_max3_f32 v12, v{hML}, v{hML+4}, s{sT0}")
    allred_pl("v_max_f32", 12, 13)
    g(f"v_sub_f32 v14, v{hML}, v12")
    g(f"v_sub_f32 v15, v{hML+4}, v12")
    g(f"v_sub_f32 v18, s{sT0}, v12")
    g(f"v_sub_f32 v19, v{hG}, v12")
    g("v_exp_f32 v14, v14")
    g("v_exp_f32 v15, v15")
    g("v_exp_f32 v18, v18")
    g("v_exp_f32 v19, v19")
    g(f"v_cvt_f32_u32 v20, s{sT2}")
    g(f"v_mul_f32 v14, v14, v{hML+1}")
    g(f"v_fmac_f32 v14, v15, v{hML+5}")
    allred_pl("v_add_f32", 14, 13)
    g("v_fmac_f32 v14, v18, v20", "softmax denominator")
    g("v_rcp_f32 v14, v14")
    g("s_mov_b64 exec, 0xf")
    g("v_mul_f32 v19, v19, v14")
    g("v_mul_f32 v18, v18, v14")
    g(f"ds_write_b32 v{hLf}, v19 offset:{FLO}")
    g(f"ds_write_b32 v{hLf}, v18 offset:{FLO+16}")
    g(f"ds_write_b32 v{hLf}, v50 offset:{FLO+32}")
    g("s_waitcnt lgkmcnt(0)")
    if stamps:
        for i in range(3, 6):
            stamp(i)
        dump_stamps(True)
    g.lab("L_code_end")
    g("s_endpgm")
    g.raw('.section .rodata,"a"')
    g.raw(".p2align 6")
    g.raw(kd(main, NV, NS))
    return g.text()

if __name__ == "__main__":
    import argparse
    ap = argparse.ArgumentParser()
    ap.add_argument("-o", default=f"cdna_kernels/{NAME}.s")
    ap.add_argument("--da", default="5656")
    ap.add_argument("--db", default="8888")
    ap.add_argument("--hxor", type=int, default=3)
    ap.add_argument("--rtab", default="00002203")
    ap.add_argument("--mls", type=int, default=64)
    ap.add_argument("--stamps", action="store_true")
    ap.add_argument("--cpf", type=int, default=0)
    ap.add_argument("--early", action="store_true")
    ap.add_argument("--tlb", action="store_true")
    ap.add_argument("--enc", type=int, default=None)
    a = ap.parse_args()
    open(a.o, "w").write(gen(DA=tuple(map(int, a.da)), DB=tuple(map(int, a.db)), hxor=a.hxor, rtab=a.rtab, mls=a.mls, stamps=a.stamps, cpf=a.cpf, early=a.early, enc=a.enc, tlb=a.tlb))
```

```python
import struct, math

NAME = "standalone__paged_block_table_kv_pagedattention__decode"
KV_BYTES = 4100 * 32768
WS_BYTES = 537395200
ML_BASE = 1 << 20
EP_BASE = ML_BASE + 0x8000
STAMP_BASE = 2 << 20
INC_LO, INC_HI = 0x7F4A7C15, 0x9E3779B9
SPIN = 0x200000
LOG2E = math.log2(math.e)
SM2 = -998244352.0 * LOG2E

def f32(x):
    return "0x%08x" % struct.unpack("<I", struct.pack("<f", x))[0]

HEADER = """; Kernarg layout for this problem (64 bytes, ptrs only, base s[0:1]):
"""

DOC = """; Split-KV decode attention in one launch.  256 workgroups = 8 kv heads x 32 slices of the context
;   middle   workgroup max; the helper trades {max, sum} with the other 31 workgroups of the head and
; Hand-offs are 16-byte granules {data, data, tag64}; tag = epoch word found in d_ws + constant, stored back as
"""

class G:
    def __init__(s):
        s.L = []
    def __call__(s, t, c=None):
        s.L.append("    " + t + (("" if c is None else " " * max(1, 62 - len(t)) + "; " + c)))
    def lab(s, t, c=None):
        s.L.append(t + ":" + ("" if c is None else "   ; " + c))
    def raw(s, t):
        s.L.append(t)
    def cm(s, t):
        s.L.append("    ; " + t)
    def text(s):
        return "\n".join(s.L) + "\n"

def kd(name, vgpr, sgpr):
    acc = (vgpr + 3) // 4 * 4
    return f""".amdhsa_kernel {name}
  .amdhsa_next_free_vgpr {vgpr}
  .amdhsa_next_free_sgpr {sgpr}
  .amdhsa_accum_offset {acc}
  .amdhsa_group_segment_fixed_size 0
  .amdhsa_kernarg_size 64
  .amdhsa_user_sgpr_count 2
  .amdhsa_user_sgpr_kernarg_segment_ptr 1
  .amdhsa_system_sgpr_workgroup_id_x 1
.end_amdhsa_kernel
"""

def schedule(dist):
    issue = {p: [] for p in range(4)}
    for i in range(40, 44):
        c = i - dist[i % 4]
        issue[c % 4].append((i // 4 - c // 4, i % 4))
    t = [i - dist[i % 4] for i in range(80)]
    assert all(t[i] <= t[i + 1] for i in range(79))
    for p in issue:
        issue[p].sort()
    wait = {p: max(i for i in range(80) if t[i] < 40 + p) - (40 + p) for p in range(4)}
    npro = sum(1 for i in range(80) if t[i] < 0)
    assert all(1 <= du <= 2 for p in issue for du, _ in issue[p]) and max(dist) <= 8
    return issue, wait, npro

def gen(DA=(5,6,5,6), DB=(8,8,8,8), bmask=0x22, hxor=3, rtab="00002203", mls=64, stamps=False, cpf=0, early=False, enc=None, tlb=False, clk=False, spec=0, specw=4, winit=0):
    g = G()
    MLO = 32768
    FLO = MLO + 128
    LLO = FLO + 128
    CLO = LLO + 768
    LDS = CLO + 256
    vK0, vK1, vV0, vV1 = 1, 2, 3, 4
    vMLw, vBT, vMLr = 5, 6, 7
    vQ = 8
    vA0, vA1 = 12, 16
    vM, vL, vSc, vTok = 20, 21, 22, 23
    vMsk0, vMsk1, vS, vSn = 24, 25, 26, 27
    vT0, vT1, vT2, vNEG = 28, 29, 30, 31
    vD = 32
    vI = {(1, 0): 48, (1, 1): 49, (2, 0): 50, (2, 1): 51}
    vP = 52
    vSV = 48
    vAw, vOr, vPo, vSa, vFr = 56, 57, 58, 59, 60
    vCo, vCout, vCw = 61, 62, 63
    vR = 64
    vX = 96
    NV = 104
    sW, sH, sJ, sU = 3, 36, 37, 38
    sS, sN, sRem, sT0, sT1, sT2 = 39, 40, 41, 42, 43, 44
    sCL = 45
    sOf = {1: 46, 2: 47}
    srdI = {1: 48, 2: 52}
    srdW = 56
    sPub = 62
    sKb, sVb = 26, 28
    sMk = {1: 30, 2: 32}
    sQm = [34, 60, 76]
    sE, sEp, sTag = 20, 22, 24
    sSt = 80
    sSl, sOut, sCnt, sBo = 64, 63, 33, 65
    sO = [68, 69, 70, 71]
    srdO = 72
    sPm = [26, 28, 30, 34, 60]
    NS = 96 if stamps else 78
    def stamp(i):
        if stamps:
            g(f"s_memrealtime s[{sSt + 2*i}:{sSt + 2*i + 1}]")
    def dump_stamps(helper=False):
        if not stamps:
            return
        if enc is not None:
            if helper:
                return
            g("s_waitcnt lgkmcnt(0)")
            g(f"s_sub_u32 s{sT1}, s{sSt+2*enc}, s{sSt}")
            g(f"s_mul_i32 s{sT1}, s{sT1}, 20")
            g(f"s_add_u32 s{sT0}, s{sSt}, 4000")
            g(f"s_add_u32 s{sT0}, s{sT0}, s{sT1}")
            g.lab("L_enc")
            g("s_sleep 1")
            g(f"s_memrealtime s[{sSt+12}:{sSt+13}]")
            g("s_waitcnt lgkmcnt(0)")
            g(f"s_sub_u32 s{sT1}, s{sSt+12}, s{sT0}")
            g(f"s_cmp_lt_i32 s{sT1}, 0")
            g("s_cbranch_scc1 L_enc")
            return
        g("s_mov_b64 exec, 1")
        g("s_waitcnt lgkmcnt(0)")
        g(f"s_and_b32 s{sT0}, s{sJ}, 7")
        g(f"s_lshl3_add_u32 s{sT0}, s{sH}, s{sT0}")
        g(f"s_lshr_b32 s{sT1}, s{sJ}, 3")
        g(f"s_lshl_b32 s{sT1}, s{sT1}, 6")
        g(f"s_add_u32 s{sT0}, s{sT0}, s{sT1}")
        g(f"s_mul_i32 s{sT0}, s{sT0}, 5")
        g(f"s_add_u32 s{sT0}, s{sT0}, s{sW}")
        g(f"s_lshl_b32 s{sT0}, s{sT0}, 6")
        g(f"s_add_u32 s{sT0}, s{sT0}, {hex(STAMP_BASE)}")
        g("v_mov_b32 v5, 0")
        for i in range(6):
            g(f"v_mov_b32 v{32+i}, s{sSt+2*i}")
        g(f"s_getreg_b32 s{sT1}, hwreg(HW_REG_XCC_ID)")
        g(f"v_mov_b32 v{32+6}, s{sT1}")
        if clk:
            g(f"s_sub_u32 s{sT1}, s94, s92")
        else:
            g(f"s_getreg_b32 s{sT1}, hwreg(HW_REG_HW_ID)")
        g(f"v_mov_b32 v{32+7}, s{sT1}")
        g(f"buffer_store_dwordx4 v[32:35], v5, s[{srdW}:{srdW+3}], s{sT0} offen")
        g(f"buffer_store_dwordx4 v[36:39], v5, s[{srdW}:{srdW+3}], s{sT0} offen offset:16")
    def ws_srd():
        g(f"s_mov_b32 s{srdW}, s18", "descriptor of d_ws")
        g(f"s_mov_b32 s{srdW+1}, s19")
        g(f"s_mov_b32 s{srdW+2}, {hex(WS_BYTES)}")
        g(f"s_mov_b32 s{srdW+3}, 0x20000")
    def epoch_load():
        g(f"s_lshl_b32 s{sEp}, s{sH}, 7")
        g(f"s_add_u32 s{sEp}, s{sEp}, {hex(EP_BASE)}")
        g(f"s_add_u32 s{sEp}, s18, s{sEp}")
        g(f"s_addc_u32 s{sEp+1}, s19, 0")
        g(f"s_load_dwordx2 s[{sE}:{sE+1}], s[{sEp}:{sEp+1}], 0", "epoch word of this head")
    def make_tag():
        g(f"s_add_u32 s{sTag}, s{sE}, {hex(INC_LO)}", "this launch's tag")
        g(f"s_addc_u32 s{sTag+1}, s{sE+1}, {hex(INC_HI)}")
    def clamp_cl():
        g(f"s_max_i32 s{sCL}, s{sCL}, 0")
        g(f"s_min_i32 s{sCL}, s{sCL}, 0x10000")
    def ld(half, pos, vo, srd, so):
        r = vR + 16 * half + 4 * pos
        off = " offset:2048" if (pos & 1) else ""
        g(f"buffer_load_dwordx4 v[{r}:{r+3}], v{vo}, s[{srd}:{srd+3}], s{so} offen{off} nt")
    def swaps(op, r, t):
        g(f"v_mov_b32 v{t}, v{r}")
        g("s_nop 1")
        g(f"v_permlane16_swap_b32 v{r}, v{t}")
        g(f"{op} v{r}, v{r}, v{t}")
        g(f"v_mov_b32 v{t}, v{r}")
        g("s_nop 1")
        g(f"v_permlane32_swap_b32 v{r}, v{t}")
        g(f"{op} v{r}, v{r}, v{t}")

    schA, schB = schedule(DA), schedule(DB)
    assert schA[2] < schB[2] and schA[2] >= 4
    main = NAME + "_kernel"
    g.raw(HEADER.rstrip("\n"))
    g.raw(f"; @launch grid=(256,1,1) block=(320,1,1) lds={LDS}")
    g.raw(DOC.rstrip("\n"))
    g.raw('.amdgcn_target "amdgcn-amd-amdhsa--gfx950"')
    g.raw(".text")
    g.raw(f".globl {main}")
    g.raw(".p2align 8")
    g.raw(f".type {main},@function")
    g.lab(main)
    if not early:
        g("s_load_dwordx16 s[4:19], s[0:1], 0", "q k v table len out debug ws")
        stamp(0)
        if clk:
            g("s_memtime s[92:93]")
        g(f"v_readfirstlane_b32 s{sW}, v0")
        g("s_cmp_ge_u32 s2, 0x100")
        g("s_cbranch_scc1 L_end", "workgroups past the grid")
        g(f"v_and_b32 v{vT2}, 63, v0", "lane")
        g(f"s_and_b32 s{sH}, s2, 7")
        g(f"s_xor_b32 s{sH}, s{sH}, {hxor}", "kv head")
        g(f"s_lshr_b32 s{sJ}, s2, 3", "slice j")
        g(f"s_lshr_b32 s{sW}, s{sW}, 6", "wave")
        g(f"s_lshl_b32 s{sT1}, s{sH}, 8")
        g(f"s_cmp_eq_u32 s{sW}, 4")
        if cpf:
            g("s_cbranch_scc0 L_prod")
            if cpf < 32:
                g(f"s_cmp_lt_u32 s{sJ}, {cpf}")
                g("s_cbranch_scc0 L_helper")
            g("s_getpc_b64 s[66:67]")
            g.lab("L_pc")
            g(f"v_lshlrev_b32 v1, 7, v{vT2}")
            g(f"v_cmp_gt_u32 vcc, L_code_end-L_pc, v1")
            g("s_and_b64 exec, exec, vcc")
            g("global_load_dword v66, v1, s[66:67]", "pull the rest of the code into this die's L2")
            g("s_mov_b64 exec, -1")
            g("s_branch L_helper")
            g.lab("L_prod")
        else:
            g("s_cbranch_scc1 L_helper")
        g(f"s_lshl_b32 s{sU}, s{sW}, 5")
        g(f"s_add_u32 s{sU}, s{sU}, s{sJ}", "first logical block of this wave (then +128 each)")
        g(f"s_lshl_b32 s{sT0}, s{sU}, 2")
        g(f"v_lshrrev_b32 v{vX}, 4, v{vT2}", "g = lane>>4")
        g(f"v_and_b32 v{vX+1}, 3, v{vT2}", "c = lane&3")
        g(f"v_lshlrev_b32 v{vX+2}, 4, v{vX+1}")
        g(f"v_lshl_add_u32 v{vX+2}, v{vX}, 6, v{vX+2}", "16-byte chunk 4g+c of a row")
        g(f"v_bfe_u32 v{vX+3}, v{vT2}, 2, 2", "t = (lane>>2)&3")
        g(f"v_lshl_add_u32 v{vK0}, v{vX+3}, 13, v{vX+2}", "K: token 4t (+ load index)")
        g(f"v_add_u32 v{vK1}, 0x1000, v{vK0}")
        g(f"v_lshl_add_u32 v{vT1}, v{vX+3}, 8, v{vX+2}", "Q: head t")
        g(f"s_sub_u32 s{srdI[2]+2}, {hex(KV_BYTES)}, s{sT1}")
        g(f"s_mov_b32 s{srdI[2]+3}, 0x20000")
        if spec:
            g(f"v_lshrrev_b32 v{vD}, 2, v{vT2}")
            g(f"v_lshlrev_b32 v{vD}, 11, v{vD}")
            g(f"v_lshl_add_u32 v{vD}, v{vX+1}, 6, v{vD}")
            g(f"s_lshl_b32 s{sT2}, s{sU}, 15")
        g("s_waitcnt lgkmcnt(0)")
        g(f"s_add_u32 s10, s10, s{sT0}")
        g("s_addc_u32 s11, s11, 0")
        g(f"s_load_dword s{sOf[1]}, s[10:11], 0", "first two blocks")
        g(f"s_load_dword s{sOf[2]}, s[10:11], 512")
        g(f"s_load_dword s{sCL}, s[12:13], 0")
        g(f"s_add_u32 s{srdI[2]}, s6, s{sT1}")
        g(f"s_addc_u32 s{srdI[2]+1}, s7, 0")
        if spec:
            if specw < 4:
                g(f"s_cmp_lt_u32 s{sW}, {specw}")
                g("s_cbranch_scc0 L_nospec")
            for i in range(spec):
                if i:
                    g(f"s_add_u32 s{sT2}, s{sT2}, {hex(specw * 32 * 32768)}")
                g(f"buffer_load_dword v{vD+1+i}, v{vD}, s[{srdI[2]}:{srdI[2]+3}], s{sT2} offen", "idle memory: this head's rows of a low physical block into L2")
            g.lab("L_nospec")
        g(f"s_lshl2_add_u32 s4, s{sT1}, s4")
        g("s_addc_u32 s5, s5, 0")
        g(f"global_load_dwordx4 v[{vQ}:{vQ+3}], v{vT1}, s[4:5]")
        g("s_waitcnt lgkmcnt(0)")
    else:
        g("s_load_dwordx16 s[4:19], s[0:1], 0", "q k v table len out debug ws")
        stamp(0)
        g("s_cmp_lt_u32 s2, 8")
        g("s_cbranch_scc0 L_go")
        g("s_getpc_b64 s[66:67]")
        g.lab("L_pc")
        g("v_lshlrev_b32 v1, 7, v0")
        g("v_cmp_gt_u32 vcc, L_code_end-L_pc, v1")
        g("s_and_b64 exec, exec, vcc")
        g("s_cbranch_execz L_pf")
        g(f"global_load_dword v{vX+7}, v1, s[66:67]", "one workgroup per die pulls the code into its L2")
        g.lab("L_pf")
        g("s_mov_b64 exec, -1")
        g.lab("L_go")
        g(f"v_readfirstlane_b32 s{sW}, v0")
        g(f"s_lshr_b32 s{sJ}, s2, 3", "slice j")
        g(f"s_cmp_ge_u32 s{sJ}, 32")
        g("s_cbranch_scc1 L_end", "workgroups past the grid")
        g(f"v_and_b32 v{vT2}, 63, v0", "lane")
        g(f"s_and_b32 s{sH}, s2, 7")
        g(f"s_xor_b32 s{sH}, s{sH}, {hxor}", "kv head")
        g(f"s_lshr_b32 s{sW}, s{sW}, 6", "wave")
        g(f"s_lshl_b32 s{sT1}, s{sH}, 8")
        g(f"s_cmp_eq_u32 s{sW}, 4")
        g("s_cbranch_scc1 L_helper")
        g(f"s_lshl_b32 s{sU}, s{sW}, 5")
        g(f"s_add_u32 s{sU}, s{sU}, s{sJ}", "first logical block of this wave (then +128 each)")
        g(f"s_lshl_b32 s{sT0}, s{sU}, 2")
        g(f"v_lshrrev_b32 v{vX}, 4, v{vT2}", "g = lane>>4")
        g(f"v_and_b32 v{vX+1}, 3, v{vT2}", "c = lane&3")
        g(f"v_lshlrev_b32 v{vX+2}, 4, v{vX+1}")
        g("s_waitcnt lgkmcnt(0)")
        g(f"s_add_u32 s10, s10, s{sT0}")
        g("s_addc_u32 s11, s11, 0")
        g(f"s_load_dword s{sOf[1]}, s[10:11], 0", "first two blocks")
        g(f"s_load_dword s{sOf[2]}, s[10:11], 512")
        g(f"s_load_dword s{sCL}, s[12:13], 0")
        g(f"v_lshl_add_u32 v{vX+2}, v{vX}, 6, v{vX+2}", "16-byte chunk 4g+c of a row")
        g(f"v_bfe_u32 v{vX+3}, v{vT2}, 2, 2", "t = (lane>>2)&3")
        g(f"v_lshl_add_u32 v{vT1}, v{vX+3}, 8, v{vX+2}", "Q: head t")
        g(f"s_lshl2_add_u32 s4, s{sT1}, s4")
        g("s_addc_u32 s5, s5, 0")
        g(f"global_load_dwordx4 v[{vQ}:{vQ+3}], v{vT1}, s[4:5]")
        g(f"v_lshl_add_u32 v{vK0}, v{vX+3}, 13, v{vX+2}", "K: token 4t (+ load index)")
        g(f"v_add_u32 v{vK1}, 0x1000, v{vK0}")
        g(f"s_sub_u32 s{srdI[2]+2}, {hex(KV_BYTES)}, s{sT1}")
        g(f"s_mov_b32 s{srdI[2]+3}, 0x20000")
        g(f"s_add_u32 s{srdI[2]}, s6, s{sT1}")
        g(f"s_addc_u32 s{srdI[2]+1}, s7, 0")
        g("s_waitcnt lgkmcnt(0)")
    g(f"s_lshl_b32 s{sOf[1]}, s{sOf[1]}, 15")
    g(f"s_lshl_b32 s{sOf[2]}, s{sOf[2]}, 15")
    def pro(i):
        ld(i // 4, i % 4, vK0 if (i & 2) == 0 else vK1, srdI[2], sOf[1 + i // 4])
    for i in range(schA[2]):
        pro(i)
    stamp(1)
    g(f"s_bitcmp1_b32 {hex(bmask)}, s{sH}")
    g("s_cbranch_scc0 L_noextra")
    for i in range(schA[2], schB[2]):
        pro(i)
    g.lab("L_noextra")
    epoch_load()
    g(f"s_mov_b64 s[{sKb}:{sKb+1}], s[{srdI[2]}:{srdI[2]+1}]")
    g(f"s_add_u32 s{sVb}, s8, s{sT1}")
    g(f"s_addc_u32 s{sVb+1}, s9, 0")
    g(f"s_mov_b32 s{srdI[1]+2}, s{srdI[2]+2}")
    g(f"s_mov_b32 s{srdI[1]+3}, 0x20000")
    g(f"s_mov_b64 s[{sMk[2]}:{sMk[2]+1}], 0")
    ws_srd()
    g(f"v_and_b32 v{vX+4}, 15, v{vT2}")
    g(f"v_lshlrev_b32 v{vX+4}, 4, v{vX+4}")
    g(f"v_lshl_add_u32 v{vV0}, v{vX}, 13, v{vX+4}", "V: token 4g (+ load index), chunk lane&15")
    g(f"v_add_u32 v{vV1}, 0x1000, v{vV0}")
    g(f"v_lshl_add_u32 v{vPo}, v{vX}, 10, v{vX+4}", "publish offset q*1024 + x*16")
    g(f"s_lshl_b32 s{sPub}, s{sH}, 5")
    g(f"s_add_u32 s{sPub}, s{sPub}, s{sJ}")
    g(f"s_lshl4_add_u32 s{sPub}, s{sPub}, s{sW}")
    g(f"s_lshl_b32 s{sPub}, s{sPub}, 8", "(h*32+j)*4096 + w*256")
    g(f"s_lshl_b32 s{sT0}, s{sW}, 13")
    g(f"v_lshl_add_u32 v{vAw}, v{vT2}, 4, s{sT0}", "LDS: accumulator dump")
    g(f"v_lshl_add_u32 v{vSa}, v{vT2}, 2, s{sT0}", "LDS: score slot")
    g.cm("cross-wave sum: lane (q, 4nn+2hf+rr) reads byte hf*1024 + q*256 + w*64 + nn*16 + rr*8 of every dump")
    g(f"v_lshlrev_b32 v{vOr}, 4, v{vX+3}")
    g(f"v_lshl_add_u32 v{vOr}, v{vX}, 8, v{vOr}")
    g(f"v_bfe_u32 v{vX+5}, v{vT2}, 1, 1")
    g(f"v_lshl_add_u32 v{vOr}, v{vX+5}, 10, v{vOr}")
    g(f"v_and_b32 v{vX+5}, 1, v{vT2}")
    g(f"v_lshl_add_u32 v{vOr}, v{vX+5}, 3, v{vOr}")
    g(f"s_lshl_b32 s{sT0}, s{sW}, 6")
    g(f"v_add_u32 v{vOr}, s{sT0}, v{vOr}")
    g(f"v_lshlrev_b32 v{vFr}, 2, v{vX}")
    g.cm("finishing role: the waves of slices 24..31 each own 16 outputs of the head")
    g(f"s_sub_i32 s{sSl}, s{sJ}, 24")
    g(f"s_lshl2_add_u32 s{sSl}, s{sSl}, s{sW}")
    g(f"s_lshl_b32 s{sT0}, s{sH}, 17")
    g(f"s_lshl_b32 s{sT2}, s{sSl}, 7")
    g(f"s_add_u32 s{sO[0]}, s{sT0}, s{sT2}")
    for i in range(1, 4):
        g(f"s_add_u32 s{sO[i]}, s{sO[0]}, {hex(4096*i)}")
    g(f"s_lshl_b32 s{sOut}, s{sH}, 10")
    g(f"s_lshl_b32 s{sT0}, s{sSl}, 5")
    g(f"s_add_u32 s{sOut}, s{sOut}, s{sT0}")
    g(f"s_mov_b32 s{srdO}, s14", "descriptor of d_out")
    g(f"s_mov_b32 s{srdO+1}, s15")
    g(f"s_mov_b32 s{srdO+2}, 0x2000")
    g(f"s_mov_b32 s{srdO+3}, 0x20000")
    g(f"v_and_b32 v{vCout}, 7, v{vT2}")
    g(f"v_lshrrev_b32 v{vCo}, 3, v{vT2}")
    g(f"v_lshlrev_b32 v{vCo}, 14, v{vCo}")
    g(f"v_lshl_add_u32 v{vCo}, v{vCout}, 4, v{vCo}")
    g(f"v_lshlrev_b32 v{vCout}, 2, v{vCout}")
    g(f"s_bfe_u32 s{sT0}, s{sSl}, 0x20003")
    g(f"s_lshl_b32 s{sT0}, s{sT0}, 2")
    g(f"v_mov_b32 v{vCw}, s{sT0}")
    g(f"v_lshlrev_b32 v{vMLr}, 5, v{vX+3}")
    g(f"s_lshl_b32 s{sT0}, s{sW}, 3")
    g(f"v_add_u32 v{vMLw}, s{sT0}, v{vMLr}")
    g(f"v_lshl_add_u32 v{vTok}, v{vX}, 2, v{vX+1}", "token of this lane's score: 4g + c")
    g(f"v_mov_b32 v{vSc}, {f32(128 ** -0.5 * LOG2E)}", "log2(e)/sqrt(128)")
    g(f"v_mov_b32 v{vNEG}, 0xff800000")
    g(f"v_mov_b32 v{vM}, 0xff7fffff", "lowest finite float")
    g(f"v_mov_b32 v{vL}, 0")
    for r in range(8):
        g(f"v_mov_b32 v{vA0+r}, 0")
    for x in range(3):
        m32 = hex(0x11111111 << (x + 1))
        g(f"s_mov_b32 s{sQm[x]}, {m32}")
        g(f"s_mov_b32 s{sQm[x]+1}, {m32}")
    g(f"v_lshlrev_b32 v{vX+5}, 4, v{vX+5}")
    g(f"v_mov_b32 v{vX+6}, 0xffff")
    g(f"v_lshlrev_b32 v{vX+6}, v{vX+5}, v{vX+6}")
    g(f"v_cmp_gt_u32 vcc, 2, v{vX+1}")
    g(f"v_min_u32 v{vT0}, 40, v{vT2}")
    g(f"s_mov_b32 s{sS}, 0")
    g(f"v_cndmask_b32 v{vMsk0}, 0, v{vX+6}, vcc", "P operand masks: half-word c of a 4 x bf16 group")
    g(f"v_xor_b32 v{vMsk1}, v{vMsk0}, v{vX+6}")
    clamp_cl()
    g(f"s_add_u32 s{sN}, s{sCL}, 15")
    g(f"s_lshr_b32 s{sN}, s{sN}, 4")
    g(f"s_add_u32 s{sN}, s{sN}, 127")
    g(f"s_sub_u32 s{sN}, s{sN}, s{sU}")
    g(f"s_lshr_b32 s{sN}, s{sN}, 7", "blocks of this wave")
    g(f"s_max_u32 s{sN}, s{sN}, 2", "the two already requested are walked (masked if past the end)")
    pk = sum(int(c, 16) << (4 * i) for i, c in enumerate(rtab))
    g(f"s_getreg_b32 s{sBo}, hwreg(HW_REG_XCC_ID, 0, 3)")
    g(f"s_lshl_b32 s{sBo}, s{sBo}, 2")
    g(f"s_lshr_b32 s{sBo}, {hex(pk)}, s{sBo}")
    g(f"s_and_b32 s{sBo}, s{sBo}, 15")
    g(f"s_sub_i32 s{sBo}, s{sN}, s{sBo}", "late-starting dies take their last blocks with more loads in flight")
    g(f"s_lshl_b32 s{sT0}, s{sU}, 4")
    g(f"s_sub_i32 s{sRem}, s{sCL}, s{sT0}", "tokens left at this wave's block 0")
    g(f"s_lshl_b32 s{sT0}, s{sW}, 2")
    g(f"v_lshl_add_u32 v{vT0}, v{vT0}, 4, s{sT0}")
    g("s_barrier", "helper's block list is in LDS")
    g(f"ds_read_b32 v{vBT}, v{vT0} offset:{LLO}", "lane i = byte offset of this wave's block i")
    g("s_waitcnt lgkmcnt(0)")
    g(f"s_bitcmp1_b32 {hex(bmask)}, s{sH}")
    g("s_cbranch_scc1 L_k0B")

    D = lambda m, r=0: vD + 4 * m + r
    def phases(sch, sfx):
        issue, wait, _ = sch
        used = sorted({(du, pos >> 1) for p in issue for du, pos in issue[p]})
        dus = sorted({du for du, _ in used})
        for half in (0, 1):
            g.lab(f"L_k{half}{sfx}", "phase 1: one K block; the load stream runs on into V")
            g(f"s_add_u32 s{sT0}, s{sS}, 2")
            g(f"s_mov_b32 s{sOf[1]}, s{sOf[2]}")
            if 1 in dus:
                g(f"s_mov_b64 s[{srdI[1]}:{srdI[1]+1}], s[{srdI[2]}:{srdI[2]+1}]")
                g(f"s_mov_b64 s[{sMk[1]}:{sMk[1]+1}], s[{sMk[2]}:{sMk[2]+1}]")
            g(f"s_cmp_ge_u32 s{sT0}, s{sN}")
            g(f"s_cselect_b32 s{sT1}, s{sN}, 0")
            g(f"s_cselect_b64 s[{srdI[2]}:{srdI[2]+1}], s[{sVb}:{sVb+1}], s[{sKb}:{sKb+1}]")
            g(f"s_cselect_b64 s[{sMk[2]}:{sMk[2]+1}], -1, 0")
            g(f"s_sub_u32 s{sT0}, s{sT0}, s{sT1}")
            g(f"v_readlane_b32 s{sOf[2]}, v{vBT}, s{sT0}")
            for du, o in used:
                g(f"v_cndmask_b32 v{vI[(du, o)]}, v{vK0 + o}, v{vV0 + o}, s[{sMk[du]}:{sMk[du]+1}]")
            g(f"v_cmp_gt_i32 vcc, s{sRem}, v{vTok}")
            g(f"s_add_u32 s{sS}, s{sS}, 1")
            g(f"s_sub_i32 s{sRem}, s{sRem}, 0x800")
            for p in range(4):
                r = vR + 16 * half + 4 * p
                g(f"s_waitcnt vmcnt({wait[p]})")
                g(f"v_mfma_f32_16x16x32_bf16 v[{D(p)}:{D(p,3)}], v[{r}:{r+3}], v[{vQ}:{vQ+3}], 0")
                for du, pos in issue[p]:
                    ld((half + du) & 1, pos, vI[(du, pos >> 1)], srdI[du], sOf[du])
            g(f"s_nop {4 - len(issue[3])}")
            for r in range(4):
                for m in range(4):
                    op = "v_mul_f32_dpp" if r == 0 else "v_fmac_f32_dpp"
                    g(f"{op} v{D(m)}, v{D(m,r)}, v{vSc} quad_perm:[{r},{r},{r},{r}] row_mask:0xf bank_mask:0xf")
            g(f"v_cndmask_b32 v{vS}, v{D(0)}, v{D(1)}, s[{sQm[0]}:{sQm[0]+1}]")
            g(f"v_cndmask_b32 v{vS}, v{vS}, v{D(2)}, s[{sQm[1]}:{sQm[1]+1}]")
            g(f"v_cndmask_b32 v{vS}, v{vS}, v{D(3)}, s[{sQm[2]}:{sQm[2]+1}]")
            g(f"v_cndmask_b32 v{vS}, v{vNEG}, v{vS}, vcc", "positions past context_len")
            g(f"ds_write_b32 v{vSa}, v{vS}")
            g(f"v_max_f32 v{vT0}, v{vM}, v{vS}")
            g(f"v_sub_f32 v{vT1}, v{vM}, v{vT0}")
            g(f"v_sub_f32 v{vT2}, v{vS}, v{vT0}")
            g(f"v_exp_f32 v{vT1}, v{vT1}")
            g(f"v_exp_f32 v{vT2}, v{vT2}")
            g(f"v_mov_b32 v{vM}, v{vT0}")
            g(f"v_add_u32 v{vSa}, 0x100, v{vSa}")
            g(f"v_fma_f32 v{vL}, v{vL}, v{vT1}, v{vT2}")
            g(f"s_cmp_lt_u32 s{sS}, s{sN}")
            g(f"s_cbranch_scc0 L_mid{sfx}" if half == 0 else f"s_cbranch_scc1 L_k0{sfx}")
        g.lab(f"L_mid{sfx}", "wave max and sum per head, then the workgroup max")
        def allred(op, r, t):
            g(f"{op}_dpp v{r}, v{r}, v{r} quad_perm:[1,0,3,2] row_mask:0xf bank_mask:0xf")
            g("s_nop 1")
            g(f"{op}_dpp v{r}, v{r}, v{r} quad_perm:[2,3,0,1] row_mask:0xf bank_mask:0xf")
            swaps(op, r, t)
        stamp(5)
        g(f"s_lshl_b32 s{sT0}, s{sN}, 8")
        g(f"v_subrev_u32 v{vSa}, s{sT0}, v{vSa}")
        allred("v_max_f32", vM, vT1)
        g(f"v_sub_f32 v{vT0}, v{vT0}, v{vM}")
        g(f"v_exp_f32 v{vT0}, v{vT0}")
        g(f"ds_read_b32 v{vSn}, v{vSa}")
        g(f"v_mul_f32 v{vL}, v{vL}, v{vT0}")
        g("s_nop 1")
        allred("v_add_f32", vL, vT1)
        g("s_mov_b64 exec, 0x1111")
        g(f"ds_write_b64 v{vMLw}, v[{vM}:{vL}] offset:{MLO}")
        g("s_mov_b64 exec, -1")
        g("s_waitcnt lgkmcnt(0)")
        g("s_barrier")
        g(f"ds_read_b128 v[{vX}:{vX+3}], v{vMLr} offset:{MLO}")
        g(f"ds_read_b128 v[{vX+4}:{vX+7}], v{vMLr} offset:{MLO+16}")
        make_tag()
        g(f"v_mov_b32 v{vP+2}, s{sTag}")
        g(f"v_mov_b32 v{vP+3}, s{sTag+1}")
        g(f"s_mov_b32 s{sS}, 0")
        for i in range(4):
            g(f"s_mov_b64 s[{sPm[i]}:{sPm[i]+1}], -1")
        g(f"s_mov_b32 s{sCnt}, 0")
        g(f"v_mov_b32 v{vSV}, 0")
        g(f"v_mov_b32 v{vSV+1}, 0")
        g("s_waitcnt lgkmcnt(0)")
        g(f"v_max3_f32 v{vM}, v{vX}, v{vX+2}, v{vX+4}")
        g(f"v_max_f32 v{vM}, v{vM}, v{vX+6}")
        g(f"s_bitcmp1_b32 s{sN}, 0")
        g(f"s_cbranch_scc1 L_v1{sfx}")
        for half in (0, 1):
            g.lab(f"L_v{half}{sfx}", "phase 2: one V block")
            if sfx == "A":
                g(f"s_cmp_lt_i32 s{sS}, s{sBo}")
                g(f"s_cbranch_scc1 L_nb{half}")
                for i in range(schA[2], schB[2]):
                    ld((half + 1) & 1, i % 4, vV0 + ((i % 4) >> 1), srdI[2], sOf[2])
                g(f"s_branch L_v{half}B")
                g.lab(f"L_nb{half}")
            g(f"s_add_u32 s{sT0}, s{sS}, 2")
            g(f"s_mov_b32 s{sOf[1]}, s{sOf[2]}")
            g(f"v_readlane_b32 s{sOf[2]}, v{vBT}, s{sT0}")
            g("s_waitcnt lgkmcnt(0)")
            g(f"v_sub_f32 v{vS}, v{vSn}, v{vM}")
            g(f"v_exp_f32 v{vS}, v{vS}")
            g(f"ds_read_b32 v{vSn}, v{vSa} offset:256")
            g(f"v_cvt_pk_bf16_f32 v{vS}, v{vS}, v{vS}")
            g(f"v_add_u32 v{vSa}, 0x100, v{vSa}")
            g(f"s_add_u32 s{sS}, s{sS}, 1")
            for m in range(4):
                g(f"v_and_b32_dpp v{D(m)}, v{vS}, v{vMsk0} quad_perm:[{m},{m},{m},{m}] row_mask:0xf bank_mask:0xf")
                g(f"v_and_b32_dpp v{D(m,1)}, v{vS}, v{vMsk1} quad_perm:[{m},{m},{m},{m}] row_mask:0xf bank_mask:0xf")
            g(f"s_cmp_lt_u32 s{sS}, s{sN}")
            for p in range(4):
                r = vR + 16 * half + 4 * p
                g(f"s_waitcnt vmcnt({wait[p]})")
                g(f"v_mfma_f32_16x16x16_bf16 v[{vA0}:{vA0+3}], v[{D(p)}:{D(p,1)}], v[{r}:{r+1}], v[{vA0}:{vA0+3}]")
                g(f"v_mfma_f32_16x16x16_bf16 v[{vA1}:{vA1+3}], v[{D(p)}:{D(p,1)}], v[{r+2}:{r+3}], v[{vA1}:{vA1+3}]")
                if p == 3:
                    g("s_cbranch_scc0 L_fin")
                for du, pos in issue[p]:
                    ld((half + du) & 1, pos, vV0 + (pos >> 1), srdI[2], sOf[du])
            if half == 1:
                g(f"s_branch L_v0{sfx}")
    phases(schA, "A")
    phases(schB, "B")

    g.lab("L_fin", "sum the four waves, scale, publish")
    g("s_nop 6")
    stamp(3)
    if clk:
        g("s_memtime s[94:95]")
    g(f"ds_write_b128 v{vAw}, v[{vA0}:{vA0+3}]")
    g(f"ds_write_b128 v{vAw}, v[{vA1}:{vA1+3}] offset:1024")
    g("s_waitcnt lgkmcnt(0)")
    g("s_barrier", "also holds until the helper has left its factors and ended")
    g(f"ds_read_b32 v{vT2}, v{vCw} offset:{FLO+32}")
    for w in range(4):
        g(f"ds_read_b64 v[{vX+2*w}:{vX+2*w+1}], v{vOr} offset:{8192*w}")
    g(f"ds_read_b32 v{vT0}, v{vFr} offset:{FLO}")
    g(f"ds_read_b32 v{vT1}, v{vCw} offset:{FLO+16}")
    g("s_waitcnt lgkmcnt(4)")
    g(f"v_cmp_ne_u32 vcc, 0, v{vT2}")
    g(f"v_pk_add_f32 v[{vX}:{vX+1}], v[{vX}:{vX+1}], v[{vX+2}:{vX+3}]")
    g("s_waitcnt lgkmcnt(2)")
    g(f"v_pk_add_f32 v[{vX+4}:{vX+5}], v[{vX+4}:{vX+5}], v[{vX+6}:{vX+7}]")
    g(f"v_pk_add_f32 v[{vX}:{vX+1}], v[{vX}:{vX+1}], v[{vX+4}:{vX+5}]")
    g("s_waitcnt lgkmcnt(0)")
    g(f"v_mul_f32 v{vP}, v{vX}, v{vT0}")
    g(f"v_mul_f32 v{vP+1}, v{vX+1}, v{vT0}")
    g(f"v_readfirstlane_b32 s{sT0}, v{vT1}")
    g("s_cbranch_vccz L_far")
    g(f"buffer_store_dwordx4 v[{vP}:{vP+3}], v{vPo}, s[{srdW}:{srdW+3}], s{sPub} offen", "readers share this L2")
    g.lab("L_pubd")
    stamp(2)
    g(f"s_cmp_lt_u32 s{sJ}, 24")
    if stamps:
        g("s_cbranch_scc0 L_cons")
        g("s_waitcnt vmcnt(0)")
        g("s_branch L_pdump")
        g.lab("L_cons")
    else:
        g("s_cbranch_scc1 L_end")
    cO = vR
    g(f"s_cmp_lg_u32 s{sT0}, 0")
    g("s_cbranch_scc1 L_slow")
    g.lab("L_poll", "gather one 128-byte line from each of the 32 partials; only missing lanes are asked again")
    for i in range(4):
        g(f"s_mov_b64 exec, s[{sPm[i]}:{sPm[i]+1}]")
        g(f"s_cbranch_execz L_sk{i}")
        g(f"buffer_load_dwordx4 v[{cO+4*i}:{cO+4*i+3}], v{vCo}, s[{srdW}:{srdW+3}], s{sO[i]} offen sc1")
        g.lab(f"L_sk{i}")
    g("s_mov_b64 exec, -1")
    g(f"s_add_u32 s{sCnt}, s{sCnt}, 1")
    g("s_waitcnt vmcnt(0)")
    for i in range(4):
        g(f"v_cmp_ne_u64 s[{sPm[i]}:{sPm[i]+1}], s[{sTag}:{sTag+1}], v[{cO+4*i+2}:{cO+4*i+3}]")
    g(f"v_pk_add_f32 v[18:19], v[{cO}:{cO+1}], v[{cO+4}:{cO+5}]")
    g(f"v_pk_add_f32 v[20:21], v[{cO+8}:{cO+9}], v[{cO+12}:{cO+13}]")
    g(f"v_pk_add_f32 v[18:19], v[18:19], v[{vSV}:{vSV+1}]")
    g(f"s_cmp_ge_u32 s{sCnt}, {hex(SPIN * 2)}")
    g("v_pk_add_f32 v[18:19], v[18:19], v[20:21]")
    g("s_cbranch_scc1 L_got")
    g(f"s_or_b64 s[{sPm[4]}:{sPm[4]+1}], s[{sPm[0]}:{sPm[0]+1}], s[{sPm[1]}:{sPm[1]+1}]")
    g(f"s_or_b64 s[{sPm[4]}:{sPm[4]+1}], s[{sPm[4]}:{sPm[4]+1}], s[{sPm[2]}:{sPm[2]+1}]")
    g(f"s_or_b64 s[{sPm[4]}:{sPm[4]+1}], s[{sPm[4]}:{sPm[4]+1}], s[{sPm[3]}:{sPm[3]+1}]")
    g("s_cbranch_scc1 L_poll")
    g.lab("L_got")
    g("s_nop 0")
    g("v_permlane32_swap_b32 v18, v19")
    g("v_add_f32 v18, v18, v19")
    g("v_mov_b32 v19, v18")
    g("s_nop 1")
    g("v_permlane16_swap_b32 v18, v19")
    g("v_add_f32 v18, v18, v19")
    g("s_nop 1")
    g("v_add_f32_dpp v18, v18, v18 row_ror:8 row_mask:0xf bank_mask:0xf")
    g("v_mov_b32 v19, v18")
    g("s_nop 1")
    g("v_permlane32_swap_b32 v18, v19")
    g("v_cvt_pk_bf16_f32 v18, v18, v19")
    g("s_mov_b64 exec, 0xff")
    g(f"buffer_store_dword v18, v{vCout}, s[{srdO}:{srdO+3}], s{sOut} offen")
    if stamps:
        g.lab("L_pdump")
        stamp(4)
        dump_stamps()
    g.lab("L_end")
    g("s_endpgm")
    g.lab("L_far")
    g(f"buffer_store_dwordx4 v[{vP}:{vP+3}], v{vPo}, s[{srdW}:{srdW+3}], s{sPub} offen sc1")
    g("s_branch L_pubd")

    sB, sPh, sTok = 39, 40, 41
    srdVv = srdI[2]
    g.lab("L_slow", "masked positions carry weight (no score above the mask value): add their V as the reference does")
    g("v_and_b32 v22, 63, v0")
    g("v_lshrrev_b32 v23, 3, v22")
    g(f"s_and_b32 s{sT1}, s{sSl}, 7")
    g(f"s_lshl_b32 s{sT1}, s{sT1}, 5")
    g(f"v_lshl_add_u32 v24, v23, 11, v{vCout}")
    g(f"v_add_u32 v24, s{sT1}, v24")
    g("v_add_u32 v25, 0x4000, v24")
    g("v_add_u32 v26, 8, v23")
    g(f"s_lshr_b32 s{sB}, s{sCL}, 4")
    g(f"s_lshl_b32 s{sT1}, s{sU}, 2")
    g(f"s_sub_u32 s10, s10, s{sT1}")
    g("s_subb_u32 s11, s11, 0")
    g.lab("L_slow_loop")
    g(f"s_cmp_lt_u32 s{sB}, 0x1000")
    g("s_cbranch_scc0 L_slow_end")
    g(f"s_lshl_b32 s{sT1}, s{sB}, 2")
    g(f"s_load_dword s{sPh}, s[10:11], s{sT1}")
    g(f"s_lshl_b32 s{sTok}, s{sB}, 4")
    g(f"s_sub_i32 s{sTok}, s{sCL}, s{sTok}")
    g("s_waitcnt lgkmcnt(0)")
    g(f"s_lshl_b32 s{sPh}, s{sPh}, 15")
    g(f"buffer_load_dword v27, v24, s[{srdVv}:{srdVv+3}], s{sPh} offen")
    g(f"buffer_load_dword v28, v25, s[{srdVv}:{srdVv+3}], s{sPh} offen")
    g(f"v_cmp_le_i32 vcc, s{sTok}, v23")
    g(f"v_cmp_le_i32 s[76:77], s{sTok}, v26")
    g("s_waitcnt vmcnt(0)")
    g("v_cndmask_b32 v27, 0, v27, vcc")
    g("v_cndmask_b32 v28, 0, v28, s[76:77]")
    g("v_lshlrev_b32 v29, 16, v27")
    g("v_and_b32 v27, 0xffff0000, v27")
    g(f"v_add_f32 v{vSV}, v{vSV}, v29")
    g(f"v_add_f32 v{vSV+1}, v{vSV+1}, v27")
    g("v_lshlrev_b32 v29, 16, v28")
    g("v_and_b32 v28, 0xffff0000, v28")
    g(f"v_add_f32 v{vSV}, v{vSV}, v29")
    g(f"v_add_f32 v{vSV+1}, v{vSV+1}, v28")
    g(f"s_add_u32 s{sB}, s{sB}, 1")
    g("s_branch L_slow_loop")
    g.lab("L_slow_end")
    g(f"v_mul_f32 v{vSV}, s{sT0}, v{vSV}")
    g(f"v_mul_f32 v{vSV+1}, s{sT0}, v{vSV+1}")
    g("s_branch L_poll")

    vLane = vT2
    hML, hG = 32, 40
    hOffML, hLf, hLml, hOffPub, hOffX = 2, 4, 6, 7, 44
    sMLr, sMLw, sNb, sBk, sX = 39, 40, 46, 48, 47
    g.raw(".p2align 6")
    g.lab("L_helper")
    g(f"s_lshl_b32 s{sT2}, s{sJ}, 2")
    g(f"v_lshl_add_u32 v20, v{vLane}, 7, s{sT2}", "table entries j + 32*lane, j + 32*(lane+64)")
    g("v_add_u32 v21, 0x2000, v20")
    g(f"s_lshl_b32 s{sT0}, s{sH}, 5")
    g(f"s_add_u32 s{sT0}, s{sT0}, s{sJ}")
    g(f"s_lshl_b32 s{sT0}, s{sT0}, 12")
    g(f"v_lshlrev_b32 v12, 6, v{vLane}")
    g(f"s_and_b32 s{sT2}, s{sJ}, 7")
    g(f"s_lshl3_add_u32 s{sT2}, s{sH}, s{sT2}")
    g(f"s_lshl_b32 s{sT2}, s{sT2}, 7")
    g(f"v_add_u32 v13, s{sT2}, v12")
    g("v_mov_b32 v16, 0")
    if tlb:
        g(f"s_mul_i32 s50, s{sJ}, 0x401100")
        g(f"v_lshl_add_u32 v67, v{vLane}, 21, s50")
    g("s_waitcnt lgkmcnt(0)")
    if tlb:
        g("s_mov_b64 exec, 3")
        g("global_load_dword v68, v67, s[6:7]", "two 2 MB pages of K and of V per workgroup: address translations")
        g("global_load_dword v69, v67, s[8:9]")
        g("s_mov_b64 exec, -1")
    g("global_load_dword v22, v20, s[10:11]")
    g("global_load_dword v23, v21, s[10:11]")
    g(f"s_load_dword s{sCL}, s[12:13], 0")
    ws_srd()
    g.cm("memory is idle now: pull in the lines that will be written at the end (values unused)")
    if winit == 1:
        g("s_mov_b64 exec, 1")
    g(f"buffer_load_dword v64, v12, s[{srdW}:{srdW+3}], s{sT0} offen sc1")
    g("s_mov_b64 exec, 3")
    g("global_load_dword v65, v13, s[14:15] sc1")
    g("s_mov_b64 exec, -1")
    g(f"v_add_u32 v25, 64, v{vLane}")
    g(f"v_mov_b32 v24, v{vLane}")
    g("v_bfrev_b32 v28, 1", "0x80000000: an offset past the buffer, loads return 0")
    g(f"v_lshlrev_b32 v29, 2, v{vLane}")
    g("v_mov_b32 v18, 1")
    g(f"ds_write_b32 v29, v28 offset:{LLO+512}")
    g(f"ds_write_b32 v29, v16 offset:{CLO}")
    g("s_waitcnt lgkmcnt(0)")
    clamp_cl()
    g(f"s_add_u32 s{sNb}, s{sCL}, 15")
    g(f"s_lshr_b32 s{sNb}, s{sNb}, 4")
    g(f"s_add_u32 s{sNb}, s{sNb}, 31")
    g(f"s_sub_u32 s{sNb}, s{sNb}, s{sJ}")
    g(f"s_lshr_b32 s{sNb}, s{sNb}, 5", "blocks of this workgroup")
    g(f"s_sub_i32 s{sBk}, s{sNb}, 1")
    g(f"v_cmp_gt_i32 s[26:27], s{sBk}, v24", "movable: not the last (it may be partial) ...")
    g(f"v_cmp_gt_i32 s[28:29], s{sBk}, v25")
    g(f"v_cmp_gt_i32 s[30:31], s{sNb}, v24")
    g(f"v_cmp_gt_i32 s[34:35], s{sNb}, v25")
    g("s_andn2_b32 s26, s26, 0xff", "... and not the eight already requested")
    g("s_waitcnt vmcnt(2)")
    g.cm("counting sort by physical block id / 64")
    for r in (0, 1):
        g(f"v_lshrrev_b32 v{26+r}, 6, v{22+r}")
        g(f"v_min_u32 v{26+r}, 63, v{26+r}")
        g(f"v_lshlrev_b32 v{26+r}, 2, v{26+r}")
        g(f"s_mov_b64 exec, s[{26+2*r}:{27+2*r}]")
        g(f"ds_add_rtn_u32 v{20+r}, v{26+r}, v18 offset:{CLO}")
        g("s_mov_b64 exec, -1")
    g(f"ds_read_b32 v19, v29 offset:{CLO}")
    for r in (0, 1):
        g(f"v_lshlrev_b32 v{22+r}, 15, v{22+r}")
        g(f"v_cndmask_b32 v{22+r}, v28, v{22+r}, s[{30+4*r}:{31+4*r}]")
    g("s_waitcnt lgkmcnt(0)")
    g("v_sub_u32 v14, 8, v19")
    g("s_nop 0")
    for sh in (1, 2, 4, 8):
        g(f"v_add_u32_dpp v19, v19, v19 row_shr:{sh} row_mask:0xf bank_mask:0xf bound_ctrl:0")
        g("s_nop 1")
    g("v_add_u32_dpp v19, v19, v19 row_bcast:15 row_mask:0xa bank_mask:0xf")
    g("s_nop 1")
    g("v_add_u32_dpp v19, v19, v19 row_bcast:31 row_mask:0xc bank_mask:0xf")
    g("v_add_u32 v19, v19, v14", "first position of each bucket")
    g(f"ds_write_b32 v29, v19 offset:{CLO}")
    g(f"ds_read_b32 v14, v26 offset:{CLO}")
    g(f"ds_read_b32 v15, v27 offset:{CLO}")
    g("s_waitcnt lgkmcnt(0)")
    g("v_add_u32 v14, v14, v20")
    g("v_add_u32 v15, v15, v21")
    g("v_cndmask_b32 v24, v24, v14, s[26:27]")
    g("v_cndmask_b32 v25, v25, v15, s[28:29]")
    g("v_lshlrev_b32 v24, 2, v24")
    g("v_lshlrev_b32 v25, 2, v25")
    g(f"ds_write_b32 v24, v22 offset:{LLO}")
    g(f"ds_write_b32 v25, v23 offset:{LLO}")
    g("s_waitcnt lgkmcnt(0)")
    stamp(2)
    g("s_barrier")
    epoch_load()
    g(f"v_lshlrev_b32 v{hOffPub}, 4, v{vLane}")
    g(f"v_and_b32 v14, 3, v{vLane}", "q = lane&3")
    g(f"v_lshlrev_b32 v{hLml}, 5, v14")
    g(f"v_lshlrev_b32 v{hLf}, 2, v14")
    g(f"v_lshrrev_b32 v15, 2, v{vLane}")
    g("v_lshlrev_b32 v14, 4, v14")
    g(f"v_lshl_add_u32 v{hOffML}, v15, 7, v14")
    g(f"v_and_b32 v{hOffX}, 31, v{vLane}")
    g(f"v_lshlrev_b32 v{hOffX}, 7, v{hOffX}")
    g(f"s_lshl_b32 s{sT2}, s{sJ}, 7")
    g(f"s_lshl_b32 s{sMLr}, s{sH}, 12")
    g(f"s_add_u32 s{sMLr}, s{sMLr}, {hex(ML_BASE)}")
    g(f"s_add_u32 s{sMLw}, s{sMLr}, s{sT2}")
    g(f"s_getreg_b32 s{sX}, hwreg(HW_REG_XCC_ID)")
    g("s_waitcnt lgkmcnt(0)")
    make_tag()
    g(f"v_mov_b32 v{hG+2}, s{sTag}")
    g(f"v_mov_b32 v{hG+3}, s{sTag+1}")
    g("s_barrier", "the four waves have finished phase 1")
    g(f"ds_read_b128 v[20:23], v{hLml} offset:{MLO}")
    g(f"ds_read_b128 v[24:27], v{hLml} offset:{MLO+16}")
    g("s_waitcnt lgkmcnt(0)")
    g("v_max3_f32 v12, v20, v22, v24")
    g(f"v_max_f32 v{hG}, v12, v26")
    for w in range(4):
        g(f"v_sub_f32 v{20+2*w}, v{20+2*w}, v{hG}")
    for w in range(4):
        g(f"v_exp_f32 v{20+2*w}, v{20+2*w}")
    g(f"v_mul_f32 v{hG+1}, v20, v21")
    for w in range(1, 4):
        g(f"v_fmac_f32 v{hG+1}, v{20+2*w}, v{21+2*w}")
    g("s_mov_b64 exec, 0xf0")
    g(f"v_mov_b32 v{hG+1}, s{sX}", "granules 0-3: {M, L} per q head, 4-7: XCC id")
    g("s_mov_b64 exec, 0xff")
    g(f"buffer_store_dwordx4 v[{hG}:{hG+3}], v{hOffPub}, s[{srdW}:{srdW+3}], s{sMLw} offen sc1")
    g("s_mov_b64 exec, -1")
    g(f"s_mov_b32 s{sCnt}, 0")
    g.lab("L_pml", "wait for the 32 lines of this head (few polls: they share the memory pipe with the V stream)")
    g(f"s_sleep {mls}")
    g(f"buffer_load_dwordx4 v[{hML}:{hML+3}], v{hOffML}, s[{srdW}:{srdW+3}], s{sMLr} offen sc1")
    g(f"buffer_load_dwordx4 v[{hML+4}:{hML+7}], v{hOffML}, s[{srdW}:{srdW+3}], s{sMLr} offen offset:2048 sc1")
    g(f"buffer_load_dwordx4 v[48:51], v{hOffX}, s[{srdW}:{srdW+3}], s{sMLr} offen offset:64 sc1")
    g(f"s_add_u32 s{sCnt}, s{sCnt}, 1")
    g("s_waitcnt vmcnt(0)")
    g(f"v_cmp_ne_u64 s[{sPm[0]}:{sPm[0]+1}], s[{sTag}:{sTag+1}], v[{hML+2}:{hML+3}]")
    g(f"v_cmp_ne_u64 s[{sPm[1]}:{sPm[1]+1}], s[{sTag}:{sTag+1}], v[{hML+6}:{hML+7}]")
    g(f"v_cmp_ne_u64 s[{sPm[2]}:{sPm[2]+1}], s[{sTag}:{sTag+1}], v[50:51]")
    g(f"s_cmp_ge_u32 s{sCnt}, {hex(SPIN // 4)}")
    g("s_cbranch_scc1 L_gotml")
    g(f"s_or_b64 s[{sPm[0]}:{sPm[0]+1}], s[{sPm[0]}:{sPm[0]+1}], s[{sPm[1]}:{sPm[1]+1}]")
    g(f"s_or_b64 s[{sPm[0]}:{sPm[0]+1}], s[{sPm[0]}:{sPm[0]+1}], s[{sPm[2]}:{sPm[2]+1}]")
    g("s_cbranch_scc1 L_pml")
    g.lab("L_gotml")
    stamp(1)
    def allred_pl(op, r, t):
        g("s_nop 1")
        g(f"{op}_dpp v{r}, v{r}, v{r} row_ror:4 row_mask:0xf bank_mask:0xf")
        g("s_nop 1")
        g(f"{op}_dpp v{r}, v{r}, v{r} row_ror:8 row_mask:0xf bank_mask:0xf")
        swaps(op, r, t)
    g(f"v_cmp_ne_u32 vcc, s{sX}, v49")
    g("s_cmp_eq_u64 vcc, 0")
    g(f"s_cselect_b32 s{sBk}, 1, 0", "all 32 workgroups of this head sit behind one L2")
    g(f"v_mov_b32 v50, s{sBk}")
    g.cm("masked positions score bf16(-1e9): they join the max and the sum whenever there are any")
    g(f"s_sub_u32 s{sT2}, 0x10000, s{sCL}")
    g(f"s_cmp_eq_u32 s{sT2}, 0")
    g(f"s_mov_b32 s{sT0}, {f32(SM2)}")
    g(f"s_cmov_b32 s{sT0}, 0xff800000")
    g(f"v_max3_f32 v12, v{hML}, v{hML+4}, s{sT0}")
    allred_pl("v_max_f32", 12, 13)
    g(f"v_sub_f32 v14, v{hML}, v12")
    g(f"v_sub_f32 v15, v{hML+4}, v12")
    g(f"v_sub_f32 v18, s{sT0}, v12")
    g(f"v_sub_f32 v19, v{hG}, v12")
    g("v_exp_f32 v14, v14")
    g("v_exp_f32 v15, v15")
    g("v_exp_f32 v18, v18")
    g("v_exp_f32 v19, v19")
    g(f"v_cvt_f32_u32 v20, s{sT2}")
    g(f"v_mul_f32 v14, v14, v{hML+1}")
    g(f"v_fmac_f32 v14, v15, v{hML+5}")
    allred_pl("v_add_f32", 14, 13)
    g("v_fmac_f32 v14, v18, v20", "softmax denominator")
    g("v_rcp_f32 v14, v14")
    g("s_mov_b64 exec, 0xf")
    g("v_mul_f32 v19, v19, v14")
    g("v_mul_f32 v18, v18, v14")
    g(f"ds_write_b32 v{hLf}, v19 offset:{FLO}")
    g(f"ds_write_b32 v{hLf}, v18 offset:{FLO+16}")
    g(f"ds_write_b32 v{hLf}, v50 offset:{FLO+32}")
    g(f"s_cmp_eq_u32 s{sJ}, 0")
    g("s_cbranch_scc0 L_noep")
    g("s_mov_b64 exec, 1")
    g(f"global_store_dwordx2 v16, v[{hG+2}:{hG+3}], s[{sEp}:{sEp+1}]", "all 32 lines are in: every wave of the head has read the old epoch")
    g.lab("L_noep")
    if winit:
        g("s_mov_b64 exec, -1")
        g(f"s_lshl_b32 s{sT0}, s{sH}, 5")
        g(f"s_add_u32 s{sT0}, s{sT0}, s{sJ}")
        g(f"s_lshl_b32 s{sT0}, s{sT0}, 12")
        g(f"v_not_b32 v{hG+2}, v{hG+2}")
        g(f"s_cmp_eq_u32 s{sBk}, 0")
        g("s_cbranch_scc1 L_noinit")
        for i in range(4):
            g(f"buffer_store_dwordx4 v[{hG}:{hG+3}], v{hOffPub}, s[{srdW}:{srdW+3}], s{sT0} offen offset:{1024*i}")
        g("s_waitcnt vmcnt(0)")
        g.lab("L_noinit")
    g("s_waitcnt lgkmcnt(0)")
    if stamps:
        for i in range(3, 6):
            stamp(i)
        dump_stamps(True)
    g.lab("L_code_end")
    g("s_endpgm")
    g.raw('.section .rodata,"a"')
    g.raw(".p2align 6")
    g.raw(kd(main, NV, NS))
    return g.text()

if __name__ == "__main__":
    import argparse
    ap = argparse.ArgumentParser()
    ap.add_argument("-o", default=f"cdna_kernels/{NAME}.s")
    ap.add_argument("--da", default="5656")
    ap.add_argument("--db", default="8888")
    ap.add_argument("--hxor", type=int, default=3)
    ap.add_argument("--rtab", default="00002203")
    ap.add_argument("--mls", type=int, default=64)
    ap.add_argument("--stamps", action="store_true")
    ap.add_argument("--cpf", type=int, default=0)
    ap.add_argument("--early", action="store_true")
    ap.add_argument("--tlb", action="store_true")
    ap.add_argument("--winit", type=int, default=0)
    ap.add_argument("--spec", type=int, default=0)
    ap.add_argument("--specw", type=int, default=4)
    ap.add_argument("--clk", action="store_true")
    ap.add_argument("--enc", type=int, default=None)
    a = ap.parse_args()
    open(a.o, "w").write(gen(DA=tuple(map(int, a.da)), DB=tuple(map(int, a.db)), hxor=a.hxor, rtab=a.rtab, mls=a.mls, stamps=a.stamps, cpf=a.cpf, early=a.early, enc=a.enc, tlb=a.tlb, clk=a.clk, winit=a.winit, spec=a.spec, specw=a.specw))
```
